```python
import torch

def _softmax(x, axis=-1):
    return torch.softmax(x, dim=axis)
def _gelu(x):
    return torch.nn.functional.gelu(x, approximate="tanh")
def _silu(x):
    return torch.nn.functional.silu(x)
def _sigmoid(x):
    return torch.sigmoid(x)
def _layernorm(x, axis=-1, eps=1e-5):
    m = x.mean(dim=axis, keepdim=True)
    v = x.var(dim=axis, keepdim=True, unbiased=False)
    return (x - m) / torch.sqrt(v + eps)
def _scatter_add(tgt, idx, src, axis=0):
    return tgt.clone().index_add_(axis, idx, src)
def _segment_sum(src, seg, n):
    out = torch.zeros((n,) + src.shape[1:], dtype=src.dtype)
    return out.index_add_(0, seg, src)
def _pad(x, pw):
    flat = tuple(v for pair in reversed(pw) for v in pair)
    return torch.nn.functional.pad(x, flat)

kernel_name = 'standalone__gqa_block_cached__near_ridge'

def setup_inputs():

    _w = (lambda a: (lambda t: t.to(torch.bfloat16) if t.is_floating_point() else t)(torch.as_tensor(a)))
    B, Sq, D = 16, 128, 640
    Hq, Hkv, Sk, Dh = 32, 32, 512, 128
    assert Hq % Hkv == 0, (Hq, Hkv)
    return {
        "x": _w((lambda *s: torch.randn(*s, dtype=torch.bfloat16) * 0.8)(B, Sq, D)),
        "k_cache": _w((lambda *s: torch.randn(*s, dtype=torch.bfloat16) * 0.8)(B, Hkv, Sk, Dh)),
        "v_cache": _w((lambda *s: torch.randn(*s, dtype=torch.bfloat16) * 0.05)(B, Hkv, Sk, Dh)),
        "wq": _w((lambda *s: torch.randn(*s, dtype=torch.bfloat16) * 0.8)(D, Hq * Dh) * (D ** -0.5)),
        "wo": _w((lambda *s: torch.randn(*s, dtype=torch.bfloat16) * 0.05)(Hq * Dh, D) * ((Hq * Dh) ** -0.5)),
    }

def reference(x, k_cache, v_cache, wq, wo):
    B, Sq, D = x.shape
    Hq, Dh = 32, 128
    Hkv = k_cache.shape[1]
    rep = Hq // Hkv
    q = (lambda x, *d: x.permute(*d))((x @ wq).reshape(B, Sq, Hq, Dh), 0, 2, 1, 3)
    k = (lambda x, n, axis: torch.repeat_interleave(x, n, dim=axis))(k_cache, rep, axis=1)
    v = (lambda x, n, axis: torch.repeat_interleave(x, n, dim=axis))(v_cache, rep, axis=1)
    scores = torch.einsum("bhqd,bhkd->bhqk", q, k) * (Dh ** -0.5)
    p = _softmax(scores, axis=-1)
    o = torch.einsum("bhqk,bhkd->bhqd", p, v)
    return (lambda x, *d: x.permute(*d))(o, 0, 2, 1, 3).reshape(B, Sq, Hq * Dh) @ wo
```

```python
import re

TRANS = ('v_exp_f32', 'v_log_f32', 'v_rcp_f32', 'v_rsq_f32', 'v_sqrt_f32', 'v_sin_f32', 'v_cos_f32')
NODST_S = ('s_cmp', 's_waitcnt', 's_barrier', 's_branch', 's_cbranch', 's_nop', 's_setprio', 's_sleep',
           's_endpgm', 's_bitcmp', 's_setreg')
_reg = re.compile(r'^([vsa])(\d+)$')
_rng = re.compile(r'^([vsa])\[(\d+):(\d+)\]$')


def regs_of(tok):
    t = tok.strip()
    t = t.lstrip('-').strip('|')
    if t.startswith('neg(') or t.startswith('abs('):
        t = t[4:-1]
    m = _reg.match(t)
    if m:
        return [(m.group(1), int(m.group(2)))]
    m = _rng.match(t)
    if m:
        return [(m.group(1), i) for i in range(int(m.group(2)), int(m.group(3)) + 1)]
    if t == 'vcc':
        return [('s', 106), ('s', 107)]
    if t == 'vcc_lo':
        return [('s', 106)]
    if t == 'vcc_hi':
        return [('s', 107)]
    if t == 'exec':
        return [('s', 126), ('s', 127)]
    if t == 'm0':
        return [('s', 124)]
    return []


class Ins:
    __slots__ = ('text', 'op', 'kind', 'rd', 'wr', 'A', 'B', 'C', 'passes', 'wl', 'wv', 'label', 'target',
                 'nops', 'lds', 'wide', 'tag', 'want')

    def __init__(self, text):
        self.text = text
        self.label = None
        self.target = None
        self.kind = 'other'
        self.rd = set()
        self.wr = set()
        self.A = self.B = self.C = frozenset()
        self.passes = 0
        self.wl = None
        self.wv = None
        self.nops = 0
        self.lds = False
        self.wide = frozenset()
        self.tag = None
        self.want = None
        self.op = ''
        s = text.split(';')[0].strip()
        if not s:
            self.kind = 'comment'
            return
        if s.endswith(':'):
            self.label = s[:-1]
            self.kind = 'label'
            return
        if s.startswith('.') or s.startswith('@'):
            self.kind = 'directive'
            self.op = s
            return
        parts = s.split(None, 1)
        op = parts[0]
        self.op = op
        rest = parts[1] if len(parts) > 1 else ''
        ops = [o.strip() for o in rest.split(',')] if rest else []
        mods = []
        if ops:
            last = ops[-1].split()
            ops[-1] = last[0] if last else ''
            mods = last[1:]
        R = [regs_of(o) for o in ops]
        allr = lambda xs: set(r for x in xs for r in x)
        if op.startswith('v_mfma'):
            self.kind = 'mfma'
            self.wr = set(R[0])
            self.A, self.B, self.C = frozenset(R[1]), frozenset(R[2]), frozenset(R[3])
            self.rd = allr(R[1:])
            self.passes = 8 if '32x32x16' in op else 4 if '16x16x32' in op else None
            assert self.passes
        elif op.startswith('v_'):
            self.kind = 'valu'
            if op.startswith('v_permlane') and 'swap' in op:
                self.wr = allr(R[:2]); self.rd = allr(R[:2])
            elif op.startswith('v_nop'):
                pass
            else:
                self.wr = set(R[0]); self.rd = allr(R[1:])
                if op.startswith(('v_fmac', 'v_mac', 'v_dot2c', 'v_writelane')):
                    self.rd |= set(R[0])
                if op.startswith('v_cmpx'):
                    self.wr |= set(regs_of('exec'))
                if '_co_' in op:
                    self.wr = allr(R[:2]); self.rd = allr(R[2:])
        elif op.startswith('ds_'):
            self.kind = 'ds'
            if op.startswith('ds_read') or '_rtn' in op or op.startswith(('ds_bpermute', 'ds_permute', 'ds_swizzle')):
                self.wr = set(R[0]); self.rd = allr(R[1:])
            else:
                self.rd = allr(R)
        elif op.startswith(('buffer_', 'global_')):
            self.kind = 'vmem'
            if op.startswith(('buffer_inv', 'buffer_wbl2')):
                pass
            elif 'load' in op:
                if 'lds' in mods:
                    self.lds = True
                    self.rd = allr(R) | set(regs_of('m0'))
                else:
                    self.wr = set(R[0]); self.rd = allr(R[1:])
                    if 'd16' in op:
                        self.rd |= set()
            elif 'atomic' in op:
                self.rd = allr(R)
                if 'sc0' in mods:
                    self.wr = set(R[0])
            else:
                self.rd = allr(R)
                if op.endswith(('x3', 'x4')):
                    self.wide = frozenset(R[0] if op.startswith('buffer') else R[1])
        elif op.startswith('s_'):
            self.kind = 'salu'
            if op.startswith(('s_load', 's_buffer_load', 's_memtime', 's_memrealtime')):
                self.kind = 'smem'
                self.wr = set(R[0]); self.rd = allr(R[1:])
            elif op.startswith(NODST_S):
                self.rd = allr(R)
                if op.startswith(('s_branch', 's_cbranch')):
                    self.target = ops[0]
                    self.kind = 'branch'
            else:
                self.wr = set(R[0]); self.rd = allr(R[1:])
                if 'saveexec' in op:
                    self.wr |= set(regs_of('exec'))
        else:
            raise ValueError('unknown instruction: ' + text)

    def states(self):
        if self.kind in ('label', 'comment', 'directive'):
            return 0
        if self.op == 's_nop':
            return int(self.text.split(';')[0].split()[1]) + 1
        return 1


def vs(x):
    return set(r for r in x if r[0] in 'va')


def ss(x):
    return set(r for r in x if r[0] == 's')


EXEC = set(regs_of('exec'))
M0 = set(regs_of('m0'))


def need(p, c):
    n = 0
    if p.kind == 'valu':
        pw = vs(p.wr)
        if c.kind == 'mfma' and pw & c.rd:
            n = max(n, 2)
        if c.kind == 'valu':
            if c.op.startswith('v_permlane') and pw & c.rd:
                n = max(n, 2)
            if c.op.startswith(('v_readfirstlane', 'v_readlane')) and pw & c.rd:
                n = max(n, 1)
            if p.op.startswith(TRANS) and not c.op.startswith(TRANS) and pw & c.rd:
                n = max(n, 1)
            if 'dpp' in c.text and pw & c.rd:
                n = max(n, 2)
            if ('op_sel' in p.text or 'sdwa' in p.text) and pw & (c.rd | c.wr):
                n = max(n, 1)
        if p.op.startswith(TRANS) and c.kind in ('ds', 'vmem', 'mfma') and pw & c.rd:
            n = max(n, 1)
        sw = ss(p.wr)
        if sw:
            if c.kind == 'vmem' and sw & c.rd:
                n = max(n, 5)
            if c.kind == 'valu' and sw & c.rd:
                n = max(n, 4 if c.op.startswith(('v_readlane', 'v_writelane')) else 2)
            if sw & EXEC:
                if c.kind == 'mfma' or c.op.startswith(('v_readlane', 'v_readfirstlane', 'v_writelane', 'v_permlane')):
                    n = max(n, 4)
    elif p.kind == 'mfma':
        big = 12 if p.passes == 8 else 8
        if c.kind == 'mfma':
            if p.wr & (c.A | c.B):
                n = max(n, big)
            if p.wr & c.C and not (p.wr == set(c.C) and p.passes == c.passes):
                n = max(n, big - 2)
            if p.wr & c.wr and not (p.wr == c.wr and p.passes == c.passes):
                n = max(n, big)
        elif c.kind in ('valu', 'ds', 'vmem'):
            if p.wr & (c.rd | c.wr):
                n = max(n, big)
            if c.kind == 'valu' and p.C & c.wr:
                n = max(n, 7 if p.passes == 8 else 3)
    elif p.kind == 'vmem':
        if p.wide and p.wide & c.wr:
            n = max(n, 2)
    elif p.kind == 'salu':
        if p.wr & M0 and c.kind == 'vmem' and c.lds:
            n = max(n, 1)
    return n


class Prog:
    def __init__(self):
        self.ins = []
        self.uid = 0

    def __call__(self, text, tag=None):
        for line in text.split('\n'):
            if line.strip():
                i = Ins(line.strip())
                i.tag = tag
                self.ins.append(i)

    def label(self, name):
        self(name + ':')

    def newlabel(self, base='L'):
        self.uid += 1
        return '%s_%d' % (base, self.uid)

    def reset(self):
        self('@reset')

    def loop(self, name):
        self('@loop')
        self.label(name)

    def endloop(self):
        self('@endloop')

    def wait_vm_tag(self, tag):
        self('@waitvm')
        self.ins[-1].want = tag

    def _sim(self, lo, hi, st):
        L, V = st
        i = lo
        while i < hi:
            x = self.ins[i]
            if x.kind == 'directive':
                if x.op == '@reset':
                    L, V = [], []
                elif x.op == '@loop':
                    depth, j = 1, i + 1
                    while True:
                        o = self.ins[j].op
                        if o == '@loop':
                            depth += 1
                        elif o == '@endloop':
                            depth -= 1
                            if depth == 0:
                                break
                        j += 1
                    for _ in range(3):
                        L, V = self._sim(i + 1, j, (L, V))
                    i = j
                elif x.op == '@waitvm':
                    k = None
                    for idx in range(len(V) - 1, -1, -1):
                        if V[idx][1] == x.want:
                            k = len(V) - 1 - idx
                            break
                    if k is not None:
                        k = min(k, 63)
                        x.wv = k if x.wv is None else min(x.wv, k)
                    if x.wv is not None:
                        V = V[len(V) - x.wv:] if x.wv < len(V) and x.wv > 0 else ([] if x.wv == 0 else V)
                i += 1
                continue
            if x.kind in ('label', 'comment'):
                i += 1
                continue
            if x.op == 's_waitcnt':
                m = re.search(r'vmcnt\((\d+)\)', x.text)
                if m:
                    k = int(m.group(1))
                    V = V[len(V) - k:] if 0 < k < len(V) else ([] if k == 0 else V)
                m = re.search(r'lgkmcnt\((\d+)\)', x.text)
                if m:
                    k = int(m.group(1))
                    L = L[len(L) - k:] if 0 < k < len(L) else ([] if k == 0 else L)
                i += 1
                continue
            use = x.rd | x.wr
            for (Q, attr, cap) in ((L, 'wl', 15), (V, 'wv', 63)):
                k = None
                for idx in range(len(Q) - 1, -1, -1):
                    if Q[idx][0] & use:
                        if not (Q[idx][0] & x.rd) and ((attr == 'wl' and x.kind == 'ds') or (attr == 'wv' and x.kind == 'vmem')):
                            continue
                        k = len(Q) - 1 - idx
                        break
                if k is not None:
                    if attr == 'wl' and any(e[1] == '@smem' for e in Q):
                        k = 0
                    k = min(k, cap)
                    cur = getattr(x, attr)
                    setattr(x, attr, k if cur is None else min(cur, k))
            if x.wl is not None:
                L = L[len(L) - x.wl:] if 0 < x.wl < len(L) else ([] if x.wl == 0 else L)
            if x.wv is not None:
                V = V[len(V) - x.wv:] if 0 < x.wv < len(V) else ([] if x.wv == 0 else V)
            if x.kind == 'ds':
                L = L + [(set(x.wr), x.tag)]
            elif x.kind == 'smem':
                L = L + [(set(x.wr), '@smem')]
            elif x.kind == 'vmem':
                V = V + [(set(x.wr), x.tag)]
            i += 1
        return L, V

    def finalize(self):
        for _ in range(2):
            self._sim(0, len(self.ins), ([], []))
        out = []
        for x in self.ins:
            if x.wl is not None or x.wv is not None:
                t = 's_waitcnt'
                if x.wv is not None:
                    t += ' vmcnt(%d)' % x.wv
                if x.wl is not None:
                    t += ' lgkmcnt(%d)' % x.wl
                out.append(Ins(t))
            if x.kind == 'directive' and x.op.startswith('@'):
                continue
            out.append(x)
        labels = {x.label: i for i, x in enumerate(out) if x.label}

        def check(hist, c):
            d, n = 0, 0
            for p in reversed(hist):
                r = need(p, c)
                if r > d:
                    n = max(n, r - d)
                d += p.states() + p.nops
                if d >= 13:
                    break
            return n
        for i, c in enumerate(out):
            if c.states() == 0:
                continue
            lo = max(0, i - 40)
            hist = out[lo:i]
            for k in range(len(hist) - 1, -1, -1):
                if hist[k].op in ('s_branch', 's_endpgm'):
                    hist = hist[k + 1:]
                    break
            c.nops = check(hist, c)
        for i, b in enumerate(out):
            if b.kind != 'branch':
                continue
            t = labels[b.target]
            pre = out[max(0, i - 40):i]
            extra = 0
            path = []
            d = 0
            j = t
            while j < len(out) and d < 13:
                c = out[j]
                if c.states():
                    dd = 1 + b.nops + d + c.nops
                    e = 0
                    for p in reversed(pre):
                        r = need(p, c)
                        if r > dd + e:
                            extra = max(extra, r - dd - e)
                        e += p.states() + p.nops
                        if dd + e >= 13:
                            break
                    d += c.states() + c.nops
                    if c.op in ('s_branch', 's_endpgm'):
                        break
                j += 1
            b.nops += extra
        lines = []
        for x in out:
            n = x.nops
            while n > 0:
                k = min(n, 8)
                lines.append('    s_nop %d' % (k - 1))
                n -= k
            lines.append(x.text if x.label else '    ' + x.text)
        return '\n'.join(lines) + '\n'


def vr(b, n=1):
    return 'v%d' % b if n == 1 else 'v[%d:%d]' % (b, b + n - 1)


def sr(b, n=1):
    return 's%d' % b if n == 1 else 's[%d:%d]' % (b, b + n - 1)


def interleave(main, fill, start=0, per=None):
    out = []
    n = len(main) - start
    k = 0
    for i, m in enumerate(main):
        out.append(m)
        if i >= start:
            tgt = len(fill) * (i - start + 1) // n if per is None else min(len(fill), per * (i - start + 1))
            while k < tgt:
                out.append(fill[k])
                k += 1
    out.extend(fill[k:])
    return out
```

```python
import math
import struct
import sys
from asmgen import Prog, vr, sr, interleave

NAME = 'standalone__gqa_block_cached__near_ridge'
HDR = open('cdna_kernels/%s.s.ref' % NAME).read().split('; @launch')[0]

OPT = dict(ts=0, kv0=0, kv1=4, wlin=0)
for a in sys.argv[2:]:
    k, v = a.split('=')
    OPT[k] = int(v)


def f32(x):
    return '0x%08x' % struct.unpack('<I', struct.pack('<f', x))[0]


sWG, sW, sWL, sG, sB, sH = 2, 3, 4, 5, 6, 7
X_, K_, V_, WQ_, WO_, OUT_, WS_, DBG_ = 8, 12, 16, 20, 24, 28, 32, 36
sKV = 40
sSLOT = 41
sCNT = 43
sC = 44
sWL1K = 45
sT0, sT1, sT2, sT3 = 46, 47, 48, 49
sWROW = 50
sXK = 51
sXB = 52
sDLT = 53
sASL = 54
sRING = 55
sOB = 56
sTS = 60
sTSO = 62
SLOT = 32768
XR = 65536
WR = 65536 + 49152
B1, B0 = 98304, 131072
WS_O = 0
WS_WP = 16 << 20
WS_TS = 24 << 20
WS_SIZE = 32 << 20
vL, vOK, vOV, vOW, vOX = 0, 1, 2, 3, 4
vTR = 5
vWA = 9
vOST = 13
vT0, vT1 = 14, 15
ACC = 16
Q = 80
WF1 = 80
XF = 96
S = 112
KF = 144
VF = 176
vKC = 208
vVC = 216
vM, vLS, vAL, vMX, vMY, vLS2 = 220, 221, 222, 223, 224, 225
PP = 240


def srd(P, d, p, size):
    P('s_mov_b32 s%d, s%d' % (d, p))
    P('s_mov_b32 s%d, s%d' % (d + 1, p + 1))
    P('s_mov_b32 s%d, 0x%x' % (d + 2, size))
    P('s_mov_b32 s%d, 0x20000' % (d + 3))


def prologue(P, ngrid):
    P('s_cmp_ge_u32 s2, %d' % ngrid)
    P('s_cbranch_scc1 %s' % P.endl)
    P('s_load_dwordx16 s[64:79], s[0:1], 0')
    P('v_lshrrev_b32 v1, 6, v0')
    P('v_and_b32 v0, 63, v0')
    P('v_readfirstlane_b32 s%d, v1' % sW)
    P('s_and_b32 s%d, s%d, 3' % (sWL, sW))
    P('s_lshr_b32 s%d, s%d, 2' % (sG, sW))
    P('s_lshl_b32 s%d, s%d, 10' % (sWL1K, sWL))
    P('s_waitcnt lgkmcnt(0)')
    srd(P, X_, 64, 16 * 128 * 640 * 2)
    srd(P, K_, 66, 1 << 26)
    srd(P, V_, 68, 1 << 26)
    srd(P, WQ_, 70, 640 * 4096 * 2)
    srd(P, WO_, 72, 640 * 4096 * 2)
    srd(P, OUT_, 74, 16 * 128 * 640 * 2)
    srd(P, DBG_, 76, 256)
    srd(P, WS_, 78, WS_SIZE)


def stamp(P, idx):
    if not OPT['ts']:
        return
    P('s_memrealtime s[%d:%d]' % (sTS, sTS + 1))
    P('s_waitcnt lgkmcnt(0)')
    P('s_mov_b32 s%d, s%d' % (64 + idx, sTS))


def stamp_init(P):
    if OPT['ts']:
        for i in range(32):
            P('s_mov_b32 s%d, -1' % (64 + i))


def stamp_flush(P):
    if not OPT['ts']:
        return
    P('v_mov_b32 v%d, 0' % vT1)
    for i in range(32):
        P('v_mov_b32 v%d, s%d' % (vT0, 64 + i))
        P('buffer_store_dword v%d, v%d, %s, s%d offen offset:%d' % (vT0, vT1, sr(WS_, 4), sTSO, i * 4))


def dma(P, voff, rs, soff, steps, m0, n, nt=False):
    for i in range(n):
        if i == 0:
            m0(P)
        else:
            P('s_add_u32 m0, m0, 0x1000')
        P('buffer_load_dwordx4 v%d, %s, s%d offen%s lds' % (voff, sr(rs, 4), soff, ' nt' if nt else ''))
        steps(P)


def load_w(P, dst, n):
    def step(P):
        P('s_add_u32 s%d, s%d, 0x%x' % (sWROW, sWROW, 0x1000 if OPT['wlin'] else 0x20000))
        P('s_cmp_eq_u32 s%d, 0x%x' % (sWROW, 0x28000 if OPT['wlin'] else 0x500000))
        P('s_cselect_b32 s%d, 0, s%d' % (sWROW, sWROW))
    dma(P, vOW, WQ_, sWROW, step, lambda P: P('s_add_u32 m0, s%d, 0x%x' % (sWL1K, dst)), n)


def load_x(P, dst):
    P('s_add_u32 s%d, s%d, s%d' % (sT0, sXB, sXK))
    dma(P, vOX, X_, sT0, lambda P: P('s_add_u32 s%d, s%d, 40960' % (sT0, sT0)),
        lambda P: P('s_add_u32 m0, s%d, 0x%x' % (sWL1K, dst)), 4)
    P('s_add_u32 s%d, s%d, 128' % (sXK, sXK))
    P('s_cmp_eq_u32 s%d, 1280' % sXK)
    P('s_cselect_b32 s%d, 0, s%d' % (sXK, sXK))


def load_kv(P, jump=False):
    P('s_mov_b32 s%d, s%d' % (sT0, sKV))
    dma(P, vOK, K_, sT0, lambda P: P('s_add_u32 s%d, s%d, 0x1000' % (sT0, sT0)),
        lambda P: P('s_mov_b32 m0, s%d' % sSLOT), 4, nt=True)
    dma(P, vOV, V_, sKV, lambda P: P('s_add_u32 s%d, s%d, 0x1000' % (sKV, sKV)),
        lambda P: P('s_add_u32 m0, s%d, 0x4000' % sSLOT), 4, nt=True)
    adv_kv(P, jump, False)


def adv_kv(P, jump, step=True):
    if step:
        P('s_add_u32 s%d, s%d, 0x4000' % (sKV, sKV))
    if jump:
        P('s_add_u32 s%d, s%d, 0x%x' % (sKV, sKV, 15 * 131072))
    P('s_add_u32 s%d, s%d, 0x8000' % (sSLOT, sSLOT))
    P('s_cmp_ge_u32 s%d, 0x18000' % sSLOT)
    P('s_cselect_b32 s%d, s%d, s%d' % (sSLOT, sWL1K, sSLOT))


def mfma32(d, a, b, c=None):
    return 'v_mfma_f32_32x32x16_bf16 %s, %s, %s, %s' % (vr(d, 16), vr(a, 4), vr(b, 4), vr(d, 16) if c is None else c)


def tr(dst, addr, off):
    return ['ds_read_b64_tr_b16 %s, v%d offset:%d' % (vr(dst, 2), addr, off),
            'ds_read_b64_tr_b16 %s, v%d offset:%d' % (vr(dst + 2, 2), addr, off + 1024)]


def cvt_q(P):
    for i in range(32):
        P('v_cvt_pk_bf16_f32 v%d, v%d, v%d' % (Q + i, ACC + 2 * i, ACC + 2 * i + 1))


def setup_a(P):
    P('s_and_b32 s%d, s2, 1' % sT0)
    P('s_lshl_b32 s%d, s%d, 3' % (sT0, sT0))
    P('s_lshr_b32 s%d, s2, 3' % sT1)
    P('s_and_b32 s%d, s%d, 7' % (sT2, sT1))
    P('s_add_u32 s%d, s%d, s%d' % (sB, sT0, sT2))
    P('s_and_b32 s%d, s2, 6' % sT0)
    P('s_lshl_b32 s%d, s%d, 1' % (sT0, sT0))
    P('s_lshr_b32 s%d, s2, 6' % sT3)
    P('s_add_u32 s%d, s%d, s%d' % (sH, sT0, sT3))
    P('s_mul_i32 s%d, s%d, 5' % (sT3, sT3))
    P('s_add_u32 s%d, s%d, 1' % (sT3, sT3))
    P('s_lshr_b32 s%d, s%d, 1' % (sT3, sT3))
    P('s_add_u32 s%d, s%d, s%d' % (sT3, sT3, sT2))
    P('s_sub_u32 s%d, s%d, 10' % (sT0, sT3))
    P('s_cmp_ge_u32 s%d, 10' % sT3)
    P('s_cselect_b32 s%d, s%d, s%d' % (sT3, sT0, sT3))
    P('s_lshl_b32 s%d, s%d, %d' % (sWROW, sT3, 14 if OPT['wlin'] else 19))
    P('s_lshl_b32 s%d, s%d, 7' % (sXK, sT3))
    P('s_mul_i32 s%d, s%d, 163840' % (sXB, sB))
    P('s_lshl_b32 s%d, s%d, 5' % (sT0, sB))
    P('s_add_u32 s%d, s%d, s%d' % (sT0, sT0, sH))
    P('s_lshl_b32 s%d, s%d, 17' % (sKV, sT0))
    P('s_lshl_b32 s%d, s%d, 4' % (sT1, sG))
    P('s_add_u32 s%d, s%d, s%d' % (sT0, sT0, sT1))
    P('s_lshl_b32 s%d, s%d, 15' % (sOB, sT0))
    P('s_mov_b32 s%d, s%d' % (sSLOT, sWL1K))
    P('s_mov_b32 s%d, %s' % (sC, f32(math.log2(math.e) / math.sqrt(128.0))))
    if OPT['ts']:
        P('s_lshl_b32 s%d, s2, 3' % sTSO)
        P('s_add_u32 s%d, s%d, s%d' % (sTSO, sTSO, sW))
        P('s_lshl_b32 s%d, s%d, 7' % (sTSO, sTSO))
        P('s_add_u32 s%d, s%d, 0x%x' % (sTSO, sTSO, WS_TS))
    a, b_, c, d = 20, 21, 22, 23
    P('v_lshrrev_b32 v%d, 4, v0' % a)
    P('s_lshl_b32 s%d, s%d, 2' % (sT0, sWL))
    P('v_add_u32 v%d, s%d, v%d' % (b_, sT0, a))
    P('v_and_b32 v%d, 15, v0' % c)
    P('v_xor_b32 v%d, v%d, v%d' % (d, c, b_))
    P('v_lshlrev_b32 v%d, 4, v%d' % (d, d))
    P('v_lshl_add_u32 v%d, v%d, 8, v%d' % (vOK, b_, d))
    P('v_lshlrev_b32 v%d, 2, v%d' % (d, a))
    P('v_xor_b32 v%d, v%d, v%d' % (d, c, d))
    P('v_lshlrev_b32 v%d, 4, v%d' % (d, d))
    P('v_lshl_add_u32 v%d, v%d, 8, v%d' % (vOV, b_, d))
    P('v_lshl_add_u32 v%d, v%d, %d, v%d' % (vOW, b_, 8 if OPT['wlin'] else 13, d))
    P('s_mul_i32 s%d, s%d, %d' % (sT0, sH, 163840 if OPT['wlin'] else 256))
    P('v_add_u32 v%d, s%d, v%d' % (vOW, sT0, vOW))
    P('s_and_b32 s%d, s%d, 1' % (sT0, sWL))
    P('s_lshl_b32 s%d, s%d, 2' % (sT0, sT0))
    P('v_add_u32 v%d, s%d, v%d' % (d, sT0, a))
    P('v_and_b32 v%d, 7, v0' % c)
    P('v_xor_b32 v%d, v%d, v%d' % (d, c, d))
    P('v_lshlrev_b32 v%d, 4, v%d' % (d, d))
    P('v_lshrrev_b32 v%d, 3, v0' % c)
    P('s_lshl_b32 s%d, s%d, 3' % (sT0, sWL))
    P('v_add_u32 v%d, s%d, v%d' % (c, sT0, c))
    P('s_movk_i32 s%d, 1280' % sT0)
    P('v_mul_lo_u32 v%d, v%d, s%d' % (c, c, sT0))
    P('v_add_u32 v%d, v%d, v%d' % (vOX, c, d))
    P('v_lshrrev_b32 v%d, 5, v0' % a)
    P('v_bfe_u32 v%d, v0, 2, 2' % b_)
    P('v_lshl_add_u32 v%d, v%d, 3, v%d' % (a, a, b_))
    P('v_lshlrev_b32 v%d, 8, v%d' % (a, a))
    P('v_lshl_add_u32 v%d, v%d, 6, v%d' % (a, b_, a))
    P('v_bfe_u32 v%d, v0, 4, 1' % c)
    P('v_lshl_add_u32 v%d, v%d, 5, v%d' % (a, c, a))
    P('v_and_b32 v%d, 1, v0' % c)
    P('v_lshl_add_u32 v%d, v%d, 4, v%d' % (a, c, a))
    P('v_bfe_u32 v%d, v0, 1, 1' % c)
    P('v_lshl_add_u32 v%d, v%d, 3, v%d' % (a, c, a))
    for mt in range(4):
        P('v_xor_b32 v%d, %d, v%d' % (vTR + mt, mt << 6, a))
    P('v_bfe_u32 v%d, v0, 4, 1' % a)
    P('v_lshlrev_b32 v%d, 12, v%d' % (a, a))
    P('v_lshrrev_b32 v%d, 5, v0' % b_)
    P('v_lshl_add_u32 v%d, v%d, 8, v%d' % (a, b_, a))
    P('v_and_b32 v%d, 15, v0' % b_)
    P('v_lshl_add_u32 v%d, v%d, 4, v%d' % (a, b_, a))
    P('s_lshl_b32 s%d, s%d, 13' % (sT0, sWL))
    P('v_add_u32 v%d, s%d, v%d' % (vOST, sT0, a))


def xaddr(P, dst):
    a, b_ = vT0, vT1
    P('v_and_b32 v%d, 31, v0' % a)
    P('v_bfe_u32 v%d, v0, 1, 3' % b_)
    P('v_lshlrev_b32 v%d, 7, v%d' % (a, a))
    P('v_lshl_add_u32 v%d, v%d, 4, v%d' % (a, b_, a))
    P('v_lshrrev_b32 v%d, 5, v0' % b_)
    P('v_lshlrev_b32 v%d, 4, v%d' % (b_, b_))
    P('v_xor_b32 v%d, v%d, v%d' % (a, a, b_))
    P('s_lshl_b32 s%d, s%d, 12' % (sT0, sWL))
    P('s_add_u32 s%d, s%d, 0x%x' % (sT0, sT0, XR))
    P('v_add_u32 v%d, s%d, v%d' % (a, sT0, a))
    for kk in range(4):
        P('v_xor_b32 v%d, %d, v%d' % (dst + kk, kk << 5, a))


def g0_phase0(P):
    WFa, XFa = 112, 144
    wc, xc = 208, 212
    xaddr(P, xc)
    for mt in range(4):
        P('v_add_u32 v%d, 0x%x, v%d' % (wc + mt, WR, vTR + mt))
    for i in range(64):
        P('v_mov_b32 v%d, 0' % (ACC + i))
    P('s_mov_b32 s%d, 0' % sRING)
    P('s_mov_b32 s%d, 10' % sCNT)

    def reads(ks):
        buf = ks & 1
        r = ['ds_read_b128 %s, v%d' % (vr(XFa + 4 * buf, 4), xc + ks)]
        for mt in range(4):
            r += tr(WFa + 16 * buf + 4 * mt, wc + mt, ks * 4096)
        return r

    def mm(ks):
        buf = ks & 1
        return [mfma32(ACC + 16 * mt, WFa + 16 * buf + 4 * mt, XFa + 4 * buf) for mt in range(4)]
    P('s_barrier')
    for x in reads(0):
        P(x)
    P.loop('QP0_LOOP')
    for ks in range(3):
        for x in interleave(mm(ks), reads(ks + 1), per=3):
            P(x)
    P('s_add_u32 s%d, s%d, 1' % (sRING, sRING))
    P('s_cmp_eq_u32 s%d, 3' % sRING)
    P('s_cselect_b32 s%d, 0, s%d' % (sRING, sRING))
    P('s_mov_b32 s%d, 0x4000' % sDLT)
    P('s_cselect_b32 s%d, 0xffff8000, s%d' % (sDLT, sDLT))
    for i in range(8):
        P('v_add_u32 v%d, s%d, v%d' % (wc + i, sDLT, wc + i))
    P('s_waitcnt lgkmcnt(0)')
    P('s_barrier')
    for x in interleave(mm(3), reads(0), per=3):
        P(x)
    P('s_sub_u32 s%d, s%d, 1' % (sCNT, sCNT))
    P('s_cmp_lg_u32 s%d, 0' % sCNT)
    P('s_cbranch_scc1 QP0_LOOP')
    P.endloop()
    P('s_waitcnt lgkmcnt(0)')
    cvt_q(P)


def g1_phase0(P):
    xc = ACC
    xaddr(P, xc)
    for mt in range(4):
        P('v_add_u32 v%d, 0x%x, v%d' % (vWA + mt, B1, vTR + mt))
    out = []

    def stage(i):
        load_w(P, WR + 16384 * (i % 3), 4)
        load_x(P, XR + 16384 * (i % 3))
        out.append(('st%d' % i, 8))

    def kv(n):
        load_kv(P)
        out.append(('kv%d' % n, 8))

    def wait(names):
        idx = max([i for i, o in enumerate(out) if o[0] in names] + [-1])
        n = sum(o[1] for o in out[idx + 1:])
        P('s_waitcnt vmcnt(%d) lgkmcnt(0)' % n)
        del out[:idx + 1]
    stage(0)
    if OPT['kv0'] < 0:
        kv(0)
    stage(1)
    wait(['st0'])
    stamp(P, 5)
    P('s_barrier')
    for i in range(10):
        if i + 2 <= 9:
            stage(i + 2)
        if i == 9:
            P('v_add_u32 v%d, 0x%x, v%d' % (vOW, 16 * 163840 if OPT['wlin'] else 0x1000, vOW))
            load_w(P, B0, 5)
            out.append(('w0', 5))
        if i == OPT['kv0']:
            kv(0)
        if i == OPT['kv1']:
            kv(1)
        for kk in range(4):
            P('ds_read_b128 %s, v%d offset:%d' % (vr(XF + 16 * i + 4 * kk, 4), xc + kk, 16384 * (i % 3)))
        wait(['st%d' % (i + 1)] if i < 9 else ['w0', 'kv0'])
        stamp(P, 6 + i)
        P('s_barrier')
    return out


def g1_round1(P, out):
    PK = XF
    for t in range(8):
        if t < 7:
            load_w(P, B0 if (t + 1) % 2 == 0 else B1, 5)
        if t == 2:
            P('v_lshrrev_b32 v%d, 4, v0' % vT0)
            P('s_movk_i32 s%d, 10240' % sT0)
            P('v_mul_lo_u32 v%d, v%d, s%d' % (vT0, vT0, sT0))
            P('v_and_b32 v%d, 15, v0' % vT1)
            P('v_lshl_add_u32 v%d, v%d, 1, v%d' % (vT0, vT1, vT0))
            P('s_lshr_b32 s%d, s2, 1' % sT0)
            P('s_mul_i32 s%d, s%d, 40960' % (sT0, sT0))
            P('s_and_b32 s%d, s2, 1' % sT1)
            P('s_lshl_b32 s%d, s%d, 2' % (sT1, sT1))
            P('s_add_u32 s%d, s%d, s%d' % (sT1, sT1, sWL))
            P('s_mul_i32 s%d, s%d, 160' % (sT2, sT1))
            P('s_add_u32 s%d, s%d, s%d' % (sT0, sT0, sT2))
            for j in range(8):
                for a in range(5):
                    P('buffer_load_ushort v%d, v%d, %s, s%d offen offset:%d' % (
                        PK + 20 * (j & 1) + 4 * a + (j >> 1), vT0, sr(WO_, 4), sT0, 32 * a + 1280 * (j & 1)))
                if j & 1:
                    P('s_add_u32 s%d, s%d, 2560' % (sT0, sT0))
        if t == 3:
            for i in range(20):
                P('v_lshl_or_b32 v%d, v%d, 16, v%d' % (PK + i, PK + 20 + i, PK + i))
            P('s_lshr_b32 s%d, s2, 1' % sT0)
            P('s_and_b32 s%d, s2, 1' % sT1)
            P('s_lshl_b32 s%d, s%d, 2' % (sT1, sT1))
            P('s_add_u32 s%d, s%d, s%d' % (sT1, sT1, sWL))
            P('s_lshl_b32 s%d, s%d, 7' % (sT1, sT1))
            P('s_add_u32 s%d, s%d, s%d' % (sT0, sT0, sT1))
            P('s_mul_i32 s%d, s%d, 5120' % (sT0, sT0))
            P('s_add_u32 s%d, s%d, 0x%x' % (sT0, sT0, WS_WP))
            P('v_lshlrev_b32 v%d, 4, v0' % vT0)
            for a in range(5):
                if a == 4:
                    P('s_add_u32 s%d, s%d, 0x1000' % (sT0, sT0))
                P('buffer_store_dwordx4 %s, v%d, %s, s%d offen offset:%d sc1' % (
                    vr(PK + 4 * a, 4), vT0, sr(WS_, 4), sT0, (1024 * a) & 4095))
        load_kv(P, jump=(t == 5))
        base = (B0 if t % 2 == 0 else B1) - B1
        for mt in range(4):
            for x in tr(WF1 + 4 * mt, vWA + mt, base):
                P(x)
        for j in range(5):
            for mt in range(4):
                P(mfma32(ACC + 16 * mt, WF1 + 4 * mt, XF + 4 * (5 * t + j), '0' if t == 0 and j == 0 else None))
                if j < 4:
                    for x in tr(WF1 + 4 * mt, vWA + mt, base + 4096 * (j + 1)):
                        P(x)
        if t == 7:
            cvt_q(P)
            P('s_mov_b32 s%d, 2' % sASL)
            att_setup(P, 2)
        stamp(P, 24 + t)
        P('s_waitcnt vmcnt(8)')
        stamp(P, 16 + t)
        if t < 7:
            P('s_barrier')


def att_setup(P, slot):
    a, b_ = vT0, vT1
    P('v_and_b32 v%d, 19, v0' % a)
    P('v_bfe_u32 v%d, v0, 2, 1' % b_)
    P('v_lshl_add_u32 v%d, v%d, 3, v%d' % (a, b_, a))
    P('v_bfe_u32 v%d, v0, 3, 1' % b_)
    P('v_lshl_add_u32 v%d, v%d, 2, v%d' % (a, b_, a))
    P('v_lshrrev_b32 v%d, 5, v0' % b_)
    P('v_xor_b32 v%d, v%d, v%d' % (b_, b_, a))
    P('v_and_b32 v%d, 15, v%d' % (b_, b_))
    P('v_lshlrev_b32 v%d, 4, v%d' % (b_, b_))
    P('v_lshl_add_u32 v%d, v%d, 8, v%d' % (a, a, b_))
    P('v_add_u32 v%d, 0x%x, v%d' % (a, slot * SLOT, a))
    for ks in range(8):
        P('v_xor_b32 v%d, 0x%x, v%d' % (vKC + ks, ks << 5, a))
    for mt in range(4):
        P('v_add_u32 v%d, 0x%x, v%d' % (vVC + mt, slot * SLOT + 16384, vTR + mt))
    for i in range(64):
        P('v_mov_b32 v%d, 0' % (ACC + i))
    P('v_mov_b32 v%d, 0xff800000' % vM)
    P('v_mov_b32 v%d, 0' % vLS)
    P('v_mov_b32 v%d, 0' % vLS2)
    P('s_mov_b32 s%d, 8' % sCNT)


def att(P):
    def kread(kt, ks):
        return 'ds_read_b128 %s, v%d offset:%d' % (vr(KF + 4 * ks, 4), vKC + ks, 8192 * kt)

    def vread(kp, mt):
        return tr(VF + 4 * (4 * (kp & 1) + mt), vVC + mt, 4096 * kp)

    def pv(kp, mt):
        return mfma32(ACC + 16 * mt, VF + 4 * (4 * (kp & 1) + mt), PP + 4 * kp)

    def maxes(kt, dst, first):
        s = S + 16 * kt
        r = ['v_max3_f32 v%d, v%d, v%d, v%d' % (dst, s, s + 1, first)]
        for i in range(2, 16, 2):
            r.append('v_max3_f32 v%d, v%d, v%d, v%d' % (dst, s + i, s + i + 1, dst))
        return r

    def expo(kt):
        s = S + 16 * kt
        g = []
        for i in range(0, 16, 2):
            g.append(['v_fma_f32 v%d, v%d, s%d, -v%d' % (s + i, s + i, sC, vMY),
                      'v_fma_f32 v%d, v%d, s%d, -v%d' % (s + i + 1, s + i + 1, sC, vMY),
                      'v_exp_f32 v%d, v%d' % (s + i, s + i),
                      'v_exp_f32 v%d, v%d' % (s + i + 1, s + i + 1)])
        return g

    def cvts(kt):
        s = S + 16 * kt
        return ['v_cvt_pk_bf16_f32 v%d, v%d, v%d' % (PP + 8 * kt + i, s + 2 * i, s + 2 * i + 1) for i in range(8)]

    def sums(kt):
        s = S + 16 * kt
        return ['v_add_f32 v%d, v%d, v%d' % (vLS2 if i & 1 else vLS, s + i, vLS2 if i & 1 else vLS) for i in range(16)]

    def resc(mt):
        return ['v_mul_f32 v%d, v%d, v%d' % (ACC + 16 * mt + i, vAL, ACC + 16 * mt + i) for i in range(16)]

    for ks in range(8):
        P(kread(0, ks))
    P.loop('ATT_LOOP')
    for ks in range(8):
        P(mfma32(S, KF + 4 * ks, Q + 4 * ks, '0' if ks == 0 else None))
        P(kread(1, ks))
    mm = [mfma32(S + 16, KF + 4 * ks, Q + 4 * ks, '0' if ks == 0 else None) for ks in range(8)]
    vr0 = [x for kp in range(2) for mt in range(4) for x in vread(kp, mt)]
    mx0 = maxes(0, vMX, vM)
    for ks in range(8):
        P(mm[ks])
        for x in vr0[2 * ks:2 * ks + 2]:
            P(x)
        if ks >= 4:
            for x in mx0[2 * (ks - 4):2 * (ks - 4) + 2]:
                P(x)
    for x in maxes(1, vMX, vMX):
        P(x)
    P('v_mov_b32 v%d, v%d' % (vMY, vMX))
    P('v_permlane32_swap_b32 v%d, v%d' % (vMX, vMY))
    P('v_max_f32 v%d, v%d, v%d' % (vMX, vMX, vMY))
    P('v_sub_f32 v%d, v%d, v%d' % (vAL, vM, vMX))
    P('v_mul_f32 v%d, s%d, v%d' % (vMY, sC, vMX))
    P('v_mul_f32 v%d, s%d, v%d' % (vAL, sC, vAL))
    P('v_mov_b32 v%d, v%d' % (vM, vMX))
    P('v_exp_f32 v%d, v%d' % (vAL, vAL))
    e0, c0 = expo(0), cvts(0)
    for i in range(8):
        for x in e0[i]:
            P(x)
        if i >= 1:
            P(c0[i - 1])
    P('v_mul_f32 v%d, v%d, v%d' % (vLS, vAL, vLS))
    P(c0[7])
    P('v_mul_f32 v%d, v%d, v%d' % (vLS2, vAL, vLS2))
    for x in resc(0):
        P(x)
    e1, c1 = expo(1), cvts(1)
    for mt in range(4):
        P(pv(0, mt))
        for x in vread(2, mt):
            P(x)
        if mt < 3:
            for x in resc(mt + 1):
                P(x)
        else:
            for x in e1[0] + e1[1]:
                P(x)
    for mt in range(4):
        P(pv(1, mt))
        for x in vread(3, mt):
            P(x)
        if mt < 3:
            for x in e1[2 + 2 * mt] + e1[3 + 2 * mt] + c1[2 * mt:2 * mt + 2]:
                P(x)
        else:
            for x in c1[6:8]:
                P(x)
    su = sums(0) + sums(1)
    for mt in range(4):
        P(pv(2, mt))
        for x in su[6 * mt:6 * mt + 6]:
            P(x)
    P('s_add_u32 s%d, s%d, 1' % (sASL, sASL))
    P('s_cmp_eq_u32 s%d, 3' % sASL)
    P('s_cselect_b32 s%d, 0, s%d' % (sASL, sASL))
    P('s_mov_b32 s%d, 0x8000' % sDLT)
    P('s_cselect_b32 s%d, 0xffff0000, s%d' % (sDLT, sDLT))
    for i in range(12):
        P('v_add_u32 v%d, s%d, v%d' % (vKC + i, sDLT, vKC + i))
    P('s_waitcnt vmcnt(0) lgkmcnt(0)')
    P('s_barrier')
    for mt in range(4):
        P(pv(3, mt))
        P(kread(0, 2 * mt))
        P(kread(0, 2 * mt + 1))
        for x in su[24 + 2 * mt:26 + 2 * mt]:
            P(x)
    P('s_sub_u32 s%d, s%d, 1' % (sCNT, sCNT))
    P('s_cmp_lg_u32 s%d, 0' % sCNT)
    P('s_cbranch_scc1 ATT_LOOP')
    P.endloop()
    P('s_waitcnt lgkmcnt(0)')


def o_store(P):
    P('v_add_f32 v%d, v%d, v%d' % (vLS, vLS, vLS2))
    P('v_mov_b32 v%d, v%d' % (vMY, vLS))
    P('v_permlane32_swap_b32 v%d, v%d' % (vLS, vMY))
    P('v_add_f32 v%d, v%d, v%d' % (vLS, vLS, vMY))
    P('v_rcp_f32 v%d, v%d' % (vLS, vLS))
    for mt in range(4):
        for s in range(2):
            b = ACC + 16 * mt + 8 * s
            for i in range(8):
                P('v_mul_f32 v%d, v%d, v%d' % (b + i, vLS, b + i))
            d = S + 4 * (2 * mt + s)
            for i in range(4):
                P('v_cvt_pk_bf16_f32 v%d, v%d, v%d' % (d + i, b + 2 * i, b + 2 * i + 1))
            P('buffer_store_dwordx4 %s, v%d, %s, s%d offen offset:%d sc1' % (
                vr(d, 4), vOST, sr(WS_, 4), sOB, 1024 * mt + 512 * s))


def kernel_a():
    P = Prog()
    P.endl = 'A_END'
    prologue(P, 256)
    setup_a(P)
    stamp_init(P)
    stamp(P, 0)
    P('s_cmp_lg_u32 s%d, 0' % sG)
    P('s_cbranch_scc1 G1_START')
    g0_phase0(P)
    P('s_mov_b32 s%d, 0' % sASL)
    att_setup(P, 0)
    P('s_add_u32 s%d, s%d, 0x%x' % (sKV, sKV, 16 * 131072 + 2 * 16384))
    P('s_add_u32 s%d, s%d, 0x8000' % (sSLOT, sSLOT))
    stamp(P, 1)
    P('s_branch ATT_START')
    P.label('G1_START')
    P.reset()
    out = g1_phase0(P)
    stamp(P, 1)
    g1_round1(P, out)
    stamp(P, 2)
    P('s_barrier')
    P.label('ATT_START')
    P.reset()
    att(P)
    stamp(P, 3)
    P('s_cmp_lg_u32 s%d, 0' % sG)
    P('s_cbranch_scc1 G1_FIN')
    for t in range(8):
        if t <= 5:
            load_kv(P)
        if t == 0:
            o_store(P)
            P('s_waitcnt vmcnt(0)')
        else:
            P('s_waitcnt vmcnt(%d)' % (8 if t <= 5 else 0))
        stamp(P, 16 + t)
        P('s_barrier')
        stamp(P, 24 + t)
    stamp(P, 4)
    stamp_flush(P)
    P('s_endpgm')
    P.label('G1_FIN')
    P.reset()
    o_store(P)
    stamp(P, 4)
    stamp_flush(P)
    P.label('A_END')
    P('s_endpgm')
    return P.finalize()


def kernel_b():
    P = Prog()
    P.endl = 'B_END'
    prologue(P, 256)
    AC, FB = 16, 96
    ND = 4
    sOO, sWO, sU = 40, 41, 42
    P('s_and_b32 s%d, s2, 7' % sT0)
    P('s_lshl_b32 s%d, s%d, 2' % (sT0, sT0))
    P('s_lshr_b32 s%d, s2, 3' % sT1)
    P('s_and_b32 s%d, s%d, 3' % (sT2, sT1))
    P('s_add_u32 s%d, s%d, s%d' % (sB, sT0, sT2))
    P('s_lshr_b32 s%d, s%d, 2' % (sH, sT1))
    P('s_lshl_b32 s%d, s%d, 1' % (sU, sH))
    P('s_lshl_b32 s%d, s%d, 2' % (sT2, sT2))
    P('s_add_u32 s%d, s%d, s%d' % (sU, sU, sT2))
    P('s_and_b32 s%d, s%d, 15' % (sU, sU))
    P('s_lshr_b32 s%d, s%d, 1' % (sT0, sB))
    P('s_lshl_b32 s%d, s%d, 20' % (sOO, sT0))
    P('s_and_b32 s%d, s%d, 1' % (sT0, sB))
    P('s_lshl_b32 s%d, s%d, 14' % (sT0, sT0))
    P('s_add_u32 s%d, s%d, s%d' % (sOO, sOO, sT0))
    P('s_lshl_b32 s%d, s%d, 17' % (sT0, sW))
    P('s_add_u32 s%d, s%d, s%d' % (sOO, sOO, sT0))
    P('s_lshl_b32 s%d, s%d, 7' % (sT0, sH))
    P('s_lshl_b32 s%d, s%d, 4' % (sT1, sW))
    P('s_add_u32 s%d, s%d, s%d' % (sT0, sT0, sT1))
    P('s_mul_i32 s%d, s%d, 5120' % (sWO, sT0))
    P('s_add_u32 s%d, s%d, 0x%x' % (sWO, sWO, WS_WP))
    P('v_lshlrev_b32 v1, 4, v0')
    for i in range(1, 4):
        P('v_add_u32 v%d, 0x%x, v1' % (1 + i, 4096 * i))

    def loads(i):
        f = FB + 36 * (i % ND)
        P('s_lshr_b32 s%d, s%d, 2' % (sT0, sU))
        P('s_lshl_b32 s%d, s%d, 15' % (sT0, sT0))
        P('s_and_b32 s%d, s%d, 3' % (sT1, sU))
        P('s_lshl_b32 s%d, s%d, 10' % (sT1, sT1))
        P('s_add_u32 s%d, s%d, s%d' % (sT0, sT0, sT1))
        P('s_add_u32 s%d, s%d, s%d' % (sT0, sT0, sOO))
        P('s_mul_i32 s%d, s%d, 5120' % (sT1, sU))
        P('s_add_u32 s%d, s%d, s%d' % (sT1, sT1, sWO))
        for t in range(4):
            P('buffer_load_dwordx4 %s, v%d, %s, s%d offen' % (vr(f + 4 * t, 4), 1 + t, sr(WS_, 4), sT0))
        for a in range(5):
            P('buffer_load_dwordx4 %s, v%d, %s, s%d offen offset:%d' % (
                vr(f + 16 + 4 * a, 4), 1 + (a >> 2), sr(WS_, 4), sT1, (1024 * a) & 4095))
        P('s_add_u32 s%d, s%d, 1' % (sU, sU))
        P('s_and_b32 s%d, s%d, 15' % (sU, sU))
    for i in range(ND - 1):
        loads(i)
    for i in range(16):
        if i + ND - 1 < 16:
            loads(i + ND - 1)
        f = FB + 36 * (i % ND)
        for a in range(5):
            for t in range(4):
                d = AC + 4 * (5 * t + a)
                P('v_mfma_f32_16x16x32_bf16 %s, %s, %s, %s' % (
                    vr(d, 4), vr(f + 16 + 4 * a, 4), vr(f + 4 * t, 4), '0' if i == 0 else vr(d, 4)))
    P('s_mul_i32 s%d, s%d, 20480' % (sT0, sW))
    P('v_add_u32 v5, s%d, v1' % sT0)
    for n in range(20):
        P('ds_write_b128 v5, %s offset:%d' % (vr(AC + 4 * n, 4), 1024 * n))
    P('s_waitcnt lgkmcnt(0)')
    P('s_barrier')
    P('s_mul_i32 s%d, s%d, 5120' % (sT0, sWL))
    P('s_mul_i32 s%d, s%d, 3072' % (sT1, sG))
    P('s_add_u32 s%d, s%d, s%d' % (sT0, sT0, sT1))
    P('v_add_u32 v5, s%d, v1' % sT0)
    P('v_add_u32 v6, 0x%x, v5' % (20480 * 3))
    P('v_add_u32 v7, 0x%x, v5' % (20480 * 6))
    P('v_and_b32 v8, 15, v0')
    P('s_movk_i32 s%d, 1280' % sT0)
    P('v_mul_lo_u32 v8, v8, s%d' % sT0)
    P('v_lshrrev_b32 v9, 4, v0')
    P('v_lshl_add_u32 v8, v9, 3, v8')
    P('s_lshl_b32 s%d, s%d, 2' % (sT0, sB))
    P('s_add_u32 s%d, s%d, s%d' % (sT0, sT0, sWL))
    P('s_mul_i32 s%d, s%d, 20480' % (sT0, sT0))
    P('s_mul_i32 s%d, s%d, 160' % (sT1, sH))
    P('s_add_u32 s%d, s%d, s%d' % (sT0, sT0, sT1))
    P('s_mul_i32 s%d, s%d, 96' % (sT1, sG))
    P('s_add_u32 s%d, s%d, s%d' % (sT0, sT0, sT1))
    for a in range(3):
        if a == 2:
            P('s_cmp_lg_u32 s%d, 0' % sG)
            P('s_cbranch_scc1 B_END')
        for w in range(8):
            P('ds_read_b128 %s, v%d offset:%d' % (vr(FB + 4 * w, 4), 5 + w // 3, 20480 * (w % 3) + 1024 * a))
        for w in range(1, 8):
            for r in range(4):
                P('v_add_f32 v%d, v%d, v%d' % (FB + r, FB + r, FB + 4 * w + r))
        P('v_cvt_pk_bf16_f32 v%d, v%d, v%d' % (10 + 2 * a, FB, FB + 1))
        P('v_cvt_pk_bf16_f32 v%d, v%d, v%d' % (11 + 2 * a, FB + 2, FB + 3))
        P('buffer_store_dwordx2 %s, v8, %s, s%d offen offset:%d' % (vr(10 + 2 * a, 2), sr(OUT_, 4), sT0, 32 * a))
    P.label('B_END')
    P('s_endpgm')
    return P.finalize()


def desc(name):
    return '''.p2align 6
.amdhsa_kernel %s
  .amdhsa_next_free_vgpr 256
  .amdhsa_next_free_sgpr 102
  .amdhsa_accum_offset 256
  .amdhsa_group_segment_fixed_size 0
  .amdhsa_kernarg_size 64
  .amdhsa_user_sgpr_count 2
  .amdhsa_user_sgpr_kernarg_segment_ptr 1
  .amdhsa_system_sgpr_workgroup_id_x 1
.end_amdhsa_kernel
''' % name


def main():
    ks = [(NAME + '_kernel', kernel_a()), ('oproj_kernel', kernel_b())]
    t = HDR
    for n, _ in ks:
        t += '; @launch kernel=%s grid=(256,1,1) block=(512,1,1) lds=163840\n' % n
    t += '.amdgcn_target "amdgcn-amd-amdhsa--gfx950"\n.text\n'
    for n, body in ks:
        t += '.globl %s\n.p2align 8\n.type %s,@function\n%s:\n%s' % (n, n, n, body)
    t += '.section .rodata,"a"\n'
    for n, _ in ks:
        t += desc(n)
    open(sys.argv[1], 'w').write(t)


main()
```

```python
import math
import struct
import sys
from asmgen import Prog, vr, sr, interleave

NAME = 'standalone__gqa_block_cached__near_ridge'
HDR = open('cdna_kernels/%s.s.ref' % NAME).read().split('; @launch')[0]

OPT = dict(ts=0, kv0=0, kv1=4, nt=1, bar=26, lead=4, frac=70, pa=0, pg=0, slp=2, touch=1, pfq=0, pfo=0, stop=0)
for a in sys.argv[2:]:
    k, v = a.split('=')
    assert k in OPT, k
    OPT[k] = int(v)


def f32(x):
    return '0x%08x' % struct.unpack('<I', struct.pack('<f', x))[0]


sW, sWL, sG, sB, sH = 3, 4, 5, 6, 7
X_, K_, V_, WQ_, WO_, OUT_, WS_, DBG_ = 8, 12, 16, 20, 24, 28, 32, 36
sKV = 40
sU, sGG = 41, 42
sCNT = 43
sC = 44
sWL1K = 45
sT0, sT1, sT2, sT3 = 46, 47, 48, 49
sWROW = 50
sXK = 51
sXB = 52
sDLT = 53
sASL = 54
sRING = 55
sOB = 56
sF1 = 57
sF3 = 58
sWOB = 59
sTS = 60
sTSO = 62
sW5K = 63
sPT = 96
SLOT = 32768
XR = 65536
WR = 65536 + 49152
QB = 98304
RING1 = 102400
WS_FL = 32 << 20
WS_TS = 33 << 20
WS_SIZE = 40 << 20
vOK, vOV, vOW, vOX = 1, 2, 3, 4
vTR = 5
vWA = 9
vL16 = 13
vT0, vT1 = 14, 15
ACC = 16
Q = 80
WF1 = 80
XF = 96
SA, SB = 112, 144
F = 176
NEG = 208
vKC = 224
vVC = 232
vMX, vMY, vLS, vLS2, vAL = 236, 237, 238, 239, 240
OB = 96
OA = 224
vOA = 5
vWD = 244
vFL, vCT, vFA, vCA = 249, 250, 251, 252


def srd(P, d, p, size):
    P('s_mov_b32 s%d, s%d' % (d, p))
    P('s_mov_b32 s%d, s%d' % (d + 1, p + 1))
    P('s_mov_b32 s%d, 0x%x' % (d + 2, size))
    P('s_mov_b32 s%d, 0x20000' % (d + 3))


def stamp(P, idx):
    if not OPT['ts']:
        return
    P('s_memrealtime s[%d:%d]' % (sTS, sTS + 1))
    P('s_waitcnt lgkmcnt(0)')
    P('s_mov_b32 s%d, s%d' % (64 + idx, sTS))


def stamp_if(P, pairs):
    if not OPT['ts']:
        return
    P('s_memrealtime s[%d:%d]' % (sTS, sTS + 1))
    P('s_waitcnt lgkmcnt(0)')
    for c, idx in pairs:
        P('s_cmp_eq_u32 s%d, %d' % (sCNT, c))
        P('s_cselect_b32 s%d, s%d, s%d' % (64 + idx, sTS, 64 + idx))


def stamp_init(P):
    if OPT['ts']:
        for i in range(32):
            P('s_mov_b32 s%d, -1' % (64 + i))
        P('s_lshl_b32 s%d, s2, 3' % sTSO)
        P('s_add_u32 s%d, s%d, s%d' % (sTSO, sTSO, sW))
        P('s_lshl_b32 s%d, s%d, 7' % (sTSO, sTSO))
        P('s_add_u32 s%d, s%d, 0x%x' % (sTSO, sTSO, WS_TS))


def stamp_flush(P):
    if not OPT['ts']:
        return
    P('v_mov_b32 v%d, 0' % vT1)
    for i in range(32):
        P('v_mov_b32 v%d, s%d' % (vT0, 64 + i))
        P('buffer_store_dword v%d, v%d, %s, s%d offen offset:%d' % (vT0, vT1, sr(WS_, 4), sTSO, i * 4))


def w_items(dst, n):
    it = []
    for i in range(n):
        it.append(['s_add_u32 m0, s%d, 0x%x' % (sWL1K, dst + 4096 * i),
                   'buffer_load_dwordx4 v%d, %s, s%d offen lds' % (vOW, sr(WQ_, 4), sWROW),
                   's_add_u32 s%d, s%d, 0x20000' % (sWROW, sWROW),
                   's_cmp_eq_u32 s%d, 0x500000' % sWROW,
                   's_cselect_b32 s%d, 0, s%d' % (sWROW, sWROW)])
    return it


def x_items(dst):
    it = []
    for i in range(4):
        it.append(['s_add_u32 s%d, s%d, %d' % (sT0, sXK, 40960 * i),
                   's_add_u32 m0, s%d, 0x%x' % (sWL1K, dst + 4096 * i),
                   'buffer_load_dwordx4 v%d, %s, s%d offen lds' % (vOX, sr(X_, 4), sT0)])
    it[-1] += ['s_add_u32 s%d, s%d, 128' % (sXK, sXK),
               's_cmp_eq_u32 s%d, 1280' % sXK,
               's_cselect_b32 s%d, 0, s%d' % (sXK, sXK)]
    return it


def tile_items(isv, tile):
    burst = tile + 1 if isv else tile
    lds = SLOT * (burst % 3) + (16384 if isv else 0)
    g = (tile & 7) * 16384 + (tile >> 3) * 16 * 131072
    it = []
    for i in range(4):
        it.append(['s_add_u32 s%d, s%d, 0x%x' % (sT0, sKV, g + 4096 * i),
                   's_add_u32 m0, s%d, 0x%x' % (sWL1K, lds + 4096 * i),
                   'buffer_load_dwordx4 v%d, %s, s%d offen%s lds' % (
                       vOV if isv else vOK, sr(V_ if isv else K_, 4), sT0, ' nt' if OPT['nt'] else '')])
    return it


def burst_items(i):
    return (tile_items(0, i) if i < 16 else []) + (tile_items(1, i - 1) if i > 0 else [])


def emit(P, items):
    for it in items:
        for x in it:
            P(x)


def mix(P, slots, items):
    n = len(slots)
    lo = min(OPT['lead'], n)
    hi = max(lo + 1, n * OPT['frac'] // 100)
    k = 0
    for i, s in enumerate(slots):
        for x in s:
            P(x)
        if i + 1 > lo:
            tgt = min(len(items), -(-len(items) * (i + 1 - lo) // (hi - lo)))
            emit(P, items[k:tgt])
            k = max(k, tgt)
    emit(P, items[k:])


def mfma32(d, a, b, c=None):
    return 'v_mfma_f32_32x32x16_bf16 %s, %s, %s, %s' % (vr(d, 16), vr(a, 4), vr(b, 4), vr(d, 16) if c is None else c)


def tr(dst, addr, off, d2=1024):
    return ['ds_read_b64_tr_b16 %s, v%d offset:%d' % (vr(dst, 2), addr, off),
            'ds_read_b64_tr_b16 %s, v%d offset:%d' % (vr(dst + 2, 2), addr, off + d2)]


def cvt_q(P):
    for i in range(32):
        P('v_mul_f32 v%d, s%d, v%d' % (ACC + 2 * i, sC, ACC + 2 * i))
        P('v_mul_f32 v%d, s%d, v%d' % (ACC + 2 * i + 1, sC, ACC + 2 * i + 1))
        if i:
            P('v_cvt_pk_bf16_f32 v%d, v%d, v%d' % (Q + i - 1, ACC + 2 * i - 2, ACC + 2 * i - 1))
    P('v_cvt_pk_bf16_f32 v%d, v%d, v%d' % (Q + 31, ACC + 62, ACC + 63))


def prologue(P):
    P('s_cmp_ge_u32 s2, 256')
    P('s_cbranch_scc1 %s' % P.endl)
    P('s_load_dwordx16 s[64:79], s[0:1], 0')
    P('v_lshrrev_b32 v1, 6, v0')
    P('v_and_b32 v0, 63, v0')
    P('v_readfirstlane_b32 s%d, v1' % sW)
    P('s_and_b32 s%d, s2, 1' % sT0)
    P('s_lshl_b32 s%d, s%d, 3' % (sT0, sT0))
    P('s_bfe_u32 s%d, s2, 0x30003' % sT2)
    P('s_add_u32 s%d, s%d, s%d' % (sB, sT0, sT2))
    P('s_bfe_u32 s%d, s2, 0x20001' % sGG)
    P('s_lshr_b32 s%d, s2, 6' % sU)
    P('s_lshl2_add_u32 s%d, s%d, s%d' % (sH, sGG, sU))
    P('s_and_b32 s%d, s%d, 3' % (sWL, sW))
    P('s_lshr_b32 s%d, s%d, 2' % (sG, sW))
    P('s_lshl_b32 s%d, s%d, 10' % (sWL1K, sWL))
    P('s_lshl_b32 s%d, s%d, 5' % (sT0, sB))
    P('s_add_u32 s%d, s%d, s%d' % (sT0, sT0, sH))
    P('s_lshl_b32 s%d, s%d, 17' % (sKV, sT0))
    a, b_, c, d = 20, 21, 22, 23
    P('v_lshrrev_b32 v%d, 4, v0' % a)
    P('s_lshl_b32 s%d, s%d, 2' % (sT0, sWL))
    P('v_add_u32 v%d, s%d, v%d' % (b_, sT0, a))
    P('v_and_b32 v%d, 15, v0' % c)
    P('v_xor_b32 v%d, v%d, v%d' % (d, c, b_))
    P('v_lshlrev_b32 v%d, 4, v%d' % (d, d))
    P('v_lshl_add_u32 v%d, v%d, 8, v%d' % (vOK, b_, d))
    P('v_lshlrev_b32 v%d, 2, v%d' % (d, a))
    P('v_xor_b32 v%d, v%d, v%d' % (d, c, d))
    P('v_lshlrev_b32 v%d, 4, v%d' % (d, d))
    P('v_lshl_add_u32 v%d, v%d, 8, v%d' % (vOV, b_, d))
    P('s_cmp_lg_u32 s%d, 0' % sG)
    P('s_cbranch_scc0 G0_START')
    P('s_mul_i32 s%d, s%d, 5' % (sT3, sU))
    P('s_add_u32 s%d, s%d, 1' % (sT3, sT3))
    P('s_lshr_b32 s%d, s%d, 1' % (sT3, sT3))
    P('s_add_u32 s%d, s%d, s%d' % (sT3, sT3, sT2))
    P('s_sub_u32 s%d, s%d, 10' % (sT0, sT3))
    P('s_cmp_ge_u32 s%d, 10' % sT3)
    P('s_cselect_b32 s%d, s%d, s%d' % (sT3, sT0, sT3))
    P('s_lshl_b32 s%d, s%d, 19' % (sWROW, sT3))
    P('s_lshl_b32 s%d, s%d, 7' % (sXK, sT3))
    P('v_lshl_add_u32 v%d, v%d, 13, v%d' % (vOW, b_, d))
    P('s_lshl_b32 s%d, s%d, 8' % (sT0, sH))
    P('v_add_u32 v%d, s%d, v%d' % (vOW, sT0, vOW))
    P('s_and_b32 s%d, s%d, 1' % (sT0, sWL))
    P('s_lshl_b32 s%d, s%d, 2' % (sT0, sT0))
    P('v_add_u32 v%d, s%d, v%d' % (d, sT0, a))
    P('v_and_b32 v%d, 7, v0' % c)
    P('v_xor_b32 v%d, v%d, v%d' % (d, c, d))
    P('v_lshlrev_b32 v%d, 4, v%d' % (d, d))
    P('v_lshrrev_b32 v%d, 3, v0' % c)
    P('s_lshl_b32 s%d, s%d, 7' % (sT0, sB))
    P('s_lshl3_add_u32 s%d, s%d, s%d' % (sT0, sWL, sT0))
    P('v_add_u32 v%d, s%d, v%d' % (c, sT0, c))
    P('s_movk_i32 s%d, 1280' % sT0)
    P('v_mul_lo_u32 v%d, v%d, s%d' % (c, c, sT0))
    P('v_add_u32 v%d, v%d, v%d' % (vOX, c, d))
    P('s_waitcnt lgkmcnt(0)')
    srd(P, WQ_, 70, 640 * 4096 * 2)
    srd(P, X_, 64, 16 * 128 * 640 * 2)


def srds_rest(P):
    srd(P, K_, 66, 1 << 26)
    srd(P, V_, 68, 1 << 26)
    srd(P, WS_, 78, WS_SIZE)
    srd(P, WO_, 72, 640 * 4096 * 2)
    srd(P, OUT_, 74, 16 * 128 * 640 * 2)
    srd(P, DBG_, 76, 256)


def setup_common(P):
    P('s_lshl_b32 s%d, s%d, 21' % (sOB, sB))
    P('s_add_u32 s%d, s%d, 0x100000' % (sPT, sOB))
    P('s_lshl_b32 s%d, s%d, 17' % (sT0, sGG))
    P('s_add_u32 s%d, s%d, s%d' % (sOB, sOB, sT0))
    P('s_lshl_b32 s%d, s%d, 13' % (sT0, sWL))
    P('s_add_u32 s%d, s%d, s%d' % (sOB, sOB, sT0))
    P('s_lshl2_add_u32 s%d, s%d, s%d' % (sT0, sU, sWL))
    P('s_lshl_b32 s%d, s%d, 16' % (sT1, sT0))
    P('s_add_u32 s%d, s%d, s%d' % (sPT, sPT, sT1))
    P('s_lshl4_add_u32 s%d, s%d, s%d' % (sT0, sB, sT0))
    P('s_mul_i32 s%d, s%d, 384' % (sF3, sT0))
    P('s_add_u32 s%d, s%d, 0x%x' % (sF3, sF3, WS_FL + 256))
    P('s_lshl2_add_u32 s%d, s%d, s%d' % (sT0, sGG, sWL))
    P('s_lshl4_add_u32 s%d, s%d, s%d' % (sT0, sB, sT0))
    P('s_mul_i32 s%d, s%d, 384' % (sF1, sT0))
    P('s_add_u32 s%d, s%d, 0x%x' % (sF1, sF1, WS_FL))
    P('s_mul_i32 s%d, s%d, %d' % (sWOB, sGG, 512 * 1280))
    P('s_mul_i32 s%d, s%d, 5120' % (sW5K, sWL))
    P('s_mov_b32 s%d, %s' % (sC, f32(math.log2(math.e) / math.sqrt(128.0))))
    a, b_, c = 20, 21, 22
    P('v_lshrrev_b32 v%d, 5, v0' % a)
    P('v_bfe_u32 v%d, v0, 2, 2' % b_)
    P('v_lshl_add_u32 v%d, v%d, 3, v%d' % (a, a, b_))
    P('v_lshlrev_b32 v%d, 8, v%d' % (a, a))
    P('v_lshl_add_u32 v%d, v%d, 6, v%d' % (a, b_, a))
    P('v_bfe_u32 v%d, v0, 4, 1' % c)
    P('v_lshl_add_u32 v%d, v%d, 5, v%d' % (a, c, a))
    P('v_and_b32 v%d, 1, v0' % c)
    P('v_lshl_add_u32 v%d, v%d, 4, v%d' % (a, c, a))
    P('v_bfe_u32 v%d, v0, 1, 1' % c)
    P('v_lshl_add_u32 v%d, v%d, 3, v%d' % (a, c, a))
    for mt in range(4):
        P('v_xor_b32 v%d, %d, v%d' % (vTR + mt, mt << 6, a))
    P('v_lshlrev_b32 v%d, 4, v0' % vL16)


def xaddr(P, dst):
    a, b_ = vT0, vT1
    P('v_and_b32 v%d, 31, v0' % a)
    P('v_bfe_u32 v%d, v0, 1, 3' % b_)
    P('v_lshlrev_b32 v%d, 7, v%d' % (a, a))
    P('v_lshl_add_u32 v%d, v%d, 4, v%d' % (a, b_, a))
    P('v_lshrrev_b32 v%d, 5, v0' % b_)
    P('v_lshlrev_b32 v%d, 4, v%d' % (b_, b_))
    P('v_xor_b32 v%d, v%d, v%d' % (a, a, b_))
    P('s_lshl_b32 s%d, s%d, 12' % (sT0, sWL))
    P('s_add_u32 s%d, s%d, 0x%x' % (sT0, sT0, XR))
    P('v_add_u32 v%d, s%d, v%d' % (a, sT0, a))
    for kk in range(4):
        P('v_xor_b32 v%d, %d, v%d' % (dst + kk, kk << 5, a))


def g0_phase0(P):
    WFa, XFa = 112, 144
    wc, xc = 208, 212
    P('s_lshl2_add_u32 s%d, s%d, s%d' % (sT0, sU, sF1))
    P('s_lshl2_add_u32 s%d, s%d, s%d' % (sT1, sGG, sF3))
    P('v_lshlrev_b32 v%d, 7, v0' % vT1)
    P('v_add_u32 v%d, s%d, v%d' % (vT1, sT0, vT1))
    P('v_writelane_b32 v%d, s%d, 2' % (vT1, sT1))
    P('v_mov_b32 v%d, 0' % vT0)
    P('s_mov_b64 exec, 7')
    P('buffer_store_dword v%d, v%d, %s, 0 offen sc1' % (vT0, vT1, sr(WS_, 4)))
    if OPT['touch']:
        P('s_mov_b64 exec, 1')
        P('s_add_u32 s%d, s%d, 0x%x' % (sT0, sKV, 16 * 131072))
        P('s_mul_i32 s%d, s%d, 163840' % (sT1, sB))
        P('s_add_u32 s%d, s%d, 0x%x' % (sT2, sWOB, 2048 * 1280))
        for i, (r, so) in enumerate(((K_, sT0), (V_, sT0), (WS_, sOB), (OUT_, sT1), (WO_, sWOB), (WO_, sT2))):
            P('buffer_load_dword v%d, v%d, %s, s%d offen' % (96 + i, vT0, sr(r, 4), so))
    P('s_mov_b64 exec, -1')
    xaddr(P, xc)
    for mt in range(4):
        P('v_add_u32 v%d, 0x%x, v%d' % (wc + mt, WR, vTR + mt))
    for i in range(64):
        P('v_mov_b32 v%d, 0' % (ACC + i))
    att_addr(P, 0)
    op_addr0(P)
    P('s_mov_b32 s%d, 0' % sRING)
    P('s_mov_b32 s%d, 10' % sCNT)

    def reads(ks):
        buf = ks & 1
        r = ['ds_read_b128 %s, v%d' % (vr(XFa + 4 * buf, 4), xc + ks)]
        for mt in range(4):
            r += tr(WFa + 16 * buf + 4 * mt, wc + mt, ks * 4096)
        return r

    def mm(ks):
        buf = ks & 1
        return [mfma32(ACC + 16 * mt, WFa + 16 * buf + 4 * mt, XFa + 4 * buf) for mt in range(4)]
    P('s_barrier')
    for x in reads(0):
        P(x)
    P.loop('QP0_LOOP')
    for ks in range(3):
        for x in interleave(mm(ks), reads(ks + 1), per=3):
            P(x)
    P('s_add_u32 s%d, s%d, 1' % (sRING, sRING))
    P('s_cmp_eq_u32 s%d, 3' % sRING)
    P('s_cselect_b32 s%d, 0, s%d' % (sRING, sRING))
    P('s_mov_b32 s%d, 0x4000' % sDLT)
    P('s_cselect_b32 s%d, 0xffff8000, s%d' % (sDLT, sDLT))
    for i in range(8):
        P('v_add_u32 v%d, s%d, v%d' % (wc + i, sDLT, wc + i))
    P('s_cmp_eq_u32 s%d, 1' % sCNT)
    P('s_cbranch_scc0 QP0_NW')
    P('s_waitcnt vmcnt(0)')
    P.label('QP0_NW')
    P('s_waitcnt lgkmcnt(0)')
    P('s_barrier')
    for x in interleave(mm(3), reads(0), per=3):
        P(x)
    P('s_sub_u32 s%d, s%d, 1' % (sCNT, sCNT))
    P('s_cmp_lg_u32 s%d, 0' % sCNT)
    P('s_cbranch_scc1 QP0_LOOP')
    P.endloop()
    P('s_waitcnt lgkmcnt(0)')


def g1_phase0(P):
    xc = ACC
    out = []

    def grp(name, items):
        emit(P, items)
        out.append((name, len(items)))

    def stage(i):
        grp('st%d' % i, w_items(WR + 16384 * (i % 3), 4) + x_items(XR + 16384 * (i % 3)))

    def wait(names):
        idx = max([i for i, o in enumerate(out) if o[0] in names] + [-1])
        n = sum(o[1] for o in out[idx + 1:])
        P('s_waitcnt vmcnt(%d) lgkmcnt(0)' % n)
        del out[:idx + 1]
    stage(0)
    stage(1)
    srds_rest(P)
    stamp_init(P)
    stamp(P, 0)
    setup_common(P)
    xaddr(P, xc)
    for mt in range(4):
        P('v_add_u32 v%d, 0x%x, v%d' % (vWA + mt, QB, vTR + mt))
    wait(['st0'])
    stamp(P, 1)
    P('s_barrier')
    for i in range(10):
        if i + 2 <= 9:
            stage(i + 2)
        if i == OPT['kv0']:
            grp('b0', burst_items(0))
        if i == OPT['kv1']:
            grp('b1', burst_items(1))
        if i == 8:
            grp('v12', tile_items(1, 1) + tile_items(1, 2))
        for kk in range(4):
            P('ds_read_b128 %s, v%d offset:%d' % (vr(XF + 16 * i + 4 * kk, 4), xc + kk, 16384 * (i % 3)))
        wait(['st%d' % (i + 1)] if i < 9 else ['b0'])
        if i in (1, 4, 9):
            stamp(P, {1: 2, 4: 3, 9: 4}[i])
        P('s_barrier')


NK = [0, 4, 6, 6, 6, 6, 6, 6]


def g1_round1(P):
    P('v_add_u32 v%d, 0x1000, v%d' % (vOW, vOW))
    k0 = 0
    for t in range(8):
        items = []
        if t == 1:
            P('s_cmp_lg_u32 s%d, 0' % sWL)
            P('s_cbranch_scc1 NO_CNT')
            P('s_lshl_b32 s%d, s%d, 4' % (sT0, sB))
            P('v_mov_b32 v%d, 1' % vT0)
            P('v_mov_b32 v%d, 0' % vT1)
            P('s_mov_b64 exec, 1')
            P('buffer_atomic_add v%d, v%d, %s, s%d offen' % (vT0, vT1, sr(DBG_, 4), sT0))
            P('s_mov_b64 exec, -1')
            P.label('NO_CNT')
        if t < 7:
            items += w_items(QB + 32768 * ((t + 1) & 1), NK[t + 1])
        kv = tile_items(0, t + 2) if t < 2 else burst_items(t + 2)
        items += kv
        base = 32768 * (t & 1)
        slots = []
        if NK[t]:
            for mt in range(4):
                for x in tr(WF1 + 4 * mt, vWA + mt, base):
                    P(x)
        for j in range(NK[t]):
            for mt in range(4):
                s = [mfma32(ACC + 16 * mt, WF1 + 4 * mt, XF + 4 * (k0 + j), '0' if k0 + j == 0 else None)]
                if j + 1 < NK[t]:
                    s += tr(WF1 + 4 * mt, vWA + mt, base + 4096 * (j + 1))
                slots.append(s)
        k0 += NK[t]
        mix(P, slots, items)
        if t == 7:
            cvt_q(P)
            att_addr(P, 2)
        P('s_waitcnt vmcnt(%d)' % len(kv))
        stamp(P, 5 + t)
        P('s_barrier')


def att_addr(P, slot):
    a, b_ = vT0, vT1
    P('v_and_b32 v%d, 19, v0' % a)
    P('v_bfe_u32 v%d, v0, 2, 1' % b_)
    P('v_lshl_add_u32 v%d, v%d, 3, v%d' % (a, b_, a))
    P('v_bfe_u32 v%d, v0, 3, 1' % b_)
    P('v_lshl_add_u32 v%d, v%d, 2, v%d' % (a, b_, a))
    P('v_lshrrev_b32 v%d, 5, v0' % b_)
    P('v_xor_b32 v%d, v%d, v%d' % (b_, b_, a))
    P('v_and_b32 v%d, 15, v%d' % (b_, b_))
    P('v_lshlrev_b32 v%d, 4, v%d' % (b_, b_))
    P('v_lshl_add_u32 v%d, v%d, 8, v%d' % (a, a, b_))
    P('v_add_u32 v%d, 0x%x, v%d' % (a, slot * SLOT, a))
    for ks in range(8):
        P('v_xor_b32 v%d, 0x%x, v%d' % (vKC + ks, ks << 5, a))
    for mt in range(4):
        P('v_add_u32 v%d, 0x%x, v%d' % (vVC + mt, slot * SLOT + 16384, vTR + mt))
    P('s_mov_b32 s%d, %d' % (sASL, slot))


def rd(n, order=None):
    f = F + 4 * (n % 8)
    if n < 16:
        return ['ds_read_b128 %s, v%d offset:%d' % (vr(f, 4), vKC + (n >> 1), 8192 * (n & 1))]
    kp, mt = order[n - 16] if order else ((n - 16) >> 2, n & 3)
    return tr(f, vVC + mt, 4096 * kp)


def mm_s(n, Y, c0):
    ks, kt = n >> 1, n & 1
    return mfma32(Y + 16 * kt, F + 4 * (n % 8), Q + 4 * ks, c0 if ks == 0 else None)


def mm_pv(n, X, order=None, zero=False):
    kp, mt = order[n - 16] if order else ((n - 16) >> 2, n & 3)
    return mfma32(ACC + 16 * mt, F + 4 * (n % 8), X + 16 * (kp >> 1) + 4 * (kp & 1))


def slot_adv():
    return ['s_add_u32 s%d, s%d, 1' % (sASL, sASL),
            's_cmp_eq_u32 s%d, 3' % sASL,
            's_cselect_b32 s%d, 0, s%d' % (sASL, sASL),
            's_mov_b32 s%d, 0x8000' % sDLT,
            's_cselect_b32 s%d, 0xffff0000, s%d' % (sDLT, sDLT)]


def adv(i):
    return 'v_add_u32 v%d, s%d, v%d' % (vKC + i, sDLT, vKC + i)


def expo(X):
    o = []
    for p in range(17):
        if p < 16:
            s = X + 2 * p
            o += [('v_exp_f32 v%d, v%d' % (s, s), 8, None), ('v_exp_f32 v%d, v%d' % (s + 1, s + 1), 8, None)]
        if p:
            s = X + 2 * (p - 1)
            d = X + 16 * ((p - 1) >> 3) + ((p - 1) & 7)
            o += [('v_add_f32 v%d, v%d, v%d' % (vLS, s, vLS), 4, None),
                  ('v_add_f32 v%d, v%d, v%d' % (vLS2, s + 1, vLS2), 4, None),
                  ('v_cvt_pk_bf16_f32 v%d, v%d, v%d' % (d, s, s + 1), 4, p - 1)]
    return o


def maxes(Y):
    o = ['v_max_f32 v%d, v%d, v%d' % (vMX, Y, Y + 1), 'v_max_f32 v%d, v%d, v%d' % (vMY, Y + 16, Y + 17)]
    for i in range(2, 16, 2):
        o.append('v_max3_f32 v%d, v%d, v%d, v%d' % (vMX, Y + i, Y + i + 1, vMX))
        o.append('v_max3_f32 v%d, v%d, v%d, v%d' % (vMY, Y + 16 + i, Y + 17 + i, vMY))
    o.append('v_max_f32 v%d, v%d, v%d' % (vMX, vMX, vMY))
    return o


def att_first(P, g1):
    items = burst_items(10) if g1 else []
    for n in range(8):
        P(rd(n)[0])
    if not g1:
        cvt_q(P)
    for x in slot_adv():
        P(x)
    zero = ['v_mov_b32 v%d, 0' % (ACC + i) for i in range(64)]
    for n in range(16):
        P(mm_s(n, SA, '0'))
        if n < 8:
            P(rd(n + 8)[0])
            emit(P, items[n:n + 1])
        else:
            P(adv(n - 8))
            if n < 12:
                P(adv(n))
        for x in zero[4 * n:4 * n + 4]:
            P(x)
    P('v_mov_b32 v%d, 0' % vLS)
    P('v_mov_b32 v%d, 0' % vLS2)
    P('s_mov_b32 s%d, 4' % sCNT)
    for x in maxes(SA):
        P(x)
    P('s_waitcnt vmcnt(%d) lgkmcnt(0)' % len(items))
    stamp(P, 13 if g1 else 5)
    P('s_barrier')
    for n in range(8):
        P(rd(n)[0])
    P('v_mov_b32 v%d, v%d' % (vMY, vMX))
    P('v_permlane32_swap_b32 v%d, v%d' % (vMX, vMY))
    P('v_max_f32 v%d, v%d, v%d' % (vMX, vMX, vMY))
    for i in range(16):
        P('v_sub_f32 v%d, 0, v%d' % (NEG + i, vMX))
    for i in range(32):
        P('v_sub_f32 v%d, v%d, v%d' % (SA + i, SA + i, vMX))


def att_full(P, X, Y, nm, stamps):
    ex = expo(X)
    fill = [(x, c, tg, 0) for x, c, tg in ex]
    ka = [(adv(i), 4, None, 8) for i in range(8)]
    fill = fill[:30] + [y for pair in zip(fill[30:38], ka) for y in pair] + fill[38:]
    fill += [(x, 4, None, 18) for x in maxes(Y)[:8]]
    fill += [(adv(8 + i), 4, None, 24) for i in range(4)]
    fill += [(x, 4, None, 18) for x in maxes(Y)[8:]]
    total = sum(f[1] for f in fill)
    for x in slot_adv():
        P(x)
    k, acc, done = 0, 0, set()
    bar = OPT['bar']
    for n in range(32):
        if n >= 16 and (n & 3) == 0:
            kp = (n - 16) >> 2
            while not all(p in done for p in range(4 * kp, 4 * kp + 4)):
                P(fill[k][0]); acc += fill[k][1]; done.add(fill[k][2]); k += 1
        P(mm_s(n, Y, vr(NEG, 16)) if n < 16 else mm_pv(n, X))
        if n < 24:
            for x in rd(n + 8):
                P(x)
        elif n > bar:
            P(rd(n - 24)[0])
        while k < len(fill) and acc < total * (n + 1) / 32.0 and fill[k][3] <= n:
            P(fill[k][0]); acc += fill[k][1]; done.add(fill[k][2]); k += 1
        if n == bar:
            assert all(f[3] != 8 for f in fill[k:])
            P('s_waitcnt vmcnt(0) lgkmcnt(0)')
            stamp_if(P, stamps)
            P('s_barrier')
            for m in range(bar - 23):
                P(rd(m)[0])
    for f in fill[k:]:
        P(f[0])
    P('v_cmp_lt_f32 vcc, 0x41000000, v%d' % vMX)
    P('s_cbranch_vccnz SLOW_%s' % nm)
    P.label('BACK_%s' % nm)


def att_slow(P, Y, nm):
    P.label('SLOW_%s' % nm)
    P('s_nop 7')
    P('s_nop 7')
    P('v_mov_b32 v%d, v%d' % (vMY, vMX))
    P('v_permlane32_swap_b32 v%d, v%d' % (vMX, vMY))
    P('v_max3_f32 v%d, v%d, v%d, 0' % (vMX, vMX, vMY))
    P('v_exp_f32 v%d, -v%d' % (vAL, vMX))
    for i in range(32):
        P('v_sub_f32 v%d, v%d, v%d' % (Y + i, Y + i, vMX))
    for i in range(16):
        P('v_sub_f32 v%d, v%d, v%d' % (NEG + i, NEG + i, vMX))
    P('v_mul_f32 v%d, v%d, v%d' % (vLS, vAL, vLS))
    P('v_mul_f32 v%d, v%d, v%d' % (vLS2, vAL, vLS2))
    for i in range(64):
        P('v_mul_f32 v%d, v%d, v%d' % (ACC + i, vAL, ACC + i))
    P('s_branch BACK_%s' % nm)


def att_last(P):
    order = [(kp, mt) for kp in range(2) for mt in range(4)] + [(kp, mt) for mt in range(4) for kp in (2, 3)]
    for n in range(16, 24):
        for x in rd(n, order):
            P(x)
    P('s_lshl4_add_u32 s%d, s%d, s%d' % (sT0, sG, sU))
    P('s_lshl_b32 s%d, s%d, 15' % (sT0, sT0))
    P('s_add_u32 s%d, s%d, s%d' % (sT2, sOB, sT0))
    P('s_add_u32 s%d, s%d, 0x1000' % (sT3, sT2))
    ex = expo(SB)
    k, done = 0, set()

    def upto(p):
        nonlocal k
        while p not in done:
            P(ex[k][0]); done.add(ex[k][2]); k += 1
    upto(3)
    for n in range(16, 24):
        if n == 20:
            upto(7)
        P(mm_pv(n, SB, order))
        for x in rd(n + 8, order):
            P(x)
        upto(min(15, 4 + (n - 16) * 3 // 2))
    upto(15)
    P('v_add_f32 v%d, v%d, v%d' % (vLS, vLS, vLS2))
    P('v_mov_b32 v%d, v%d' % (vMY, vLS))
    P(mm_pv(24, SB, order))
    P('v_permlane32_swap_b32 v%d, v%d' % (vLS, vMY))
    P('v_add_f32 v%d, v%d, v%d' % (vLS, vLS, vMY))
    P('v_rcp_f32 v%d, v%d' % (vLS, vLS))
    P(mm_pv(25, SB, order))
    P('s_waitcnt lgkmcnt(0)')
    stamp(P, 21)
    P('s_barrier')

    def fin(mt):
        o = []
        for s in range(2):
            b = ACC + 16 * mt + 8 * s
            for i in range(8):
                o.append('v_mul_f32 v%d, v%d, v%d' % (b + i, vLS, b + i))
            d = OB + 4 * (2 * mt + s)
            for i in range(4):
                o.append('v_cvt_pk_bf16_f32 v%d, v%d, v%d' % (d + i, b + 2 * i, b + 2 * i + 1))
            o.append('buffer_store_dwordx4 %s, v%d, %s, s%d offen offset:%d sc1' % (
                vr(d, 4), vL16, sr(WS_, 4), sT2 if mt < 2 else sT3, 1024 * ((2 * mt + s) & 3)))
        return o
    P(mm_pv(26, SB, order))
    P(mm_pv(27, SB, order))
    for mt in range(4):
        f = fin(mt)
        if mt < 2:
            P(mm_pv(28 + 2 * mt, SB, order))
            for x in f[:13]:
                P(x)
            P(mm_pv(29 + 2 * mt, SB, order))
            f = f[13:]
        for x in f:
            P(x)


def set_flag(P, base, idx, off):
    P('s_lshl2_add_u32 s%d, s%d, s%d' % (sT1, idx, base))
    P('v_mov_b32 v%d, 1' % vT0)
    P('v_mov_b32 v%d, 0' % vT1)
    P('s_mov_b64 exec, 1')
    P('buffer_store_dword v%d, v%d, %s, s%d offen offset:%d sc1' % (vT0, vT1, sr(WS_, 4), sT1, off))
    P('s_mov_b64 exec, -1')


def spin(P, nm, reg, want, load, first):
    P('s_mov_b32 s%d, 0x40000' % sT2)
    if first:
        P('v_cmp_ne_u32 vcc, %d, v%d' % (want, reg))
        P('s_cbranch_vccz SPIN%s_OUT' % nm)
    else:
        P('s_branch SPIN%s_IN' % nm)
    P.label('SPIN%s' % nm)
    P('s_sub_u32 s%d, s%d, 1' % (sT2, sT2))
    P('s_cbranch_scc1 SPIN%s_OUT' % nm)
    if OPT['slp']:
        P('s_sleep %d' % OPT['slp'])
    P.label('SPIN%s_IN' % nm)
    P(load)
    P('s_waitcnt vmcnt(0)')
    P('v_cmp_ne_u32 vcc, %d, v%d' % (want, reg))
    P('s_cbranch_vccnz SPIN%s' % nm)
    P.label('SPIN%s_OUT' % nm)


def op_addr0(P):
    a, b_ = vT0, vT1
    P('s_mul_i32 s%d, s%d, 20480' % (sT0, sWL))
    P('s_mul_i32 s%d, s%d, 320' % (sT1, sU))
    P('s_add_u32 s%d, s%d, s%d' % (sT0, sT0, sT1))
    P('s_movk_i32 s%d, 3277' % sT1)
    P('s_movk_i32 s%d, 960' % sT2)
    for i in range(5):
        P('v_add_u32 v%d, %d, v0' % (a, 64 * i))
        P('v_mul_lo_u32 v%d, v%d, s%d' % (b_, a, sT1))
        P('v_lshrrev_b32 v%d, 16, v%d' % (b_, b_))
        P('v_mul_lo_u32 v%d, v%d, s%d' % (b_, b_, sT2))
        P('v_lshl_add_u32 v%d, v%d, 4, v%d' % (b_, a, b_))
        P('v_add_u32 v%d, s%d, v%d' % (vWD + i, sT0, b_))
    P('v_and_b32 v%d, 3, v0' % vFA)
    P('v_lshlrev_b32 v%d, 2, v%d' % (vFA, vFA))
    P('s_lshl_b32 s%d, s%d, 4' % (sT0, sB))
    P('v_mov_b32 v%d, s%d' % (vCA, sT0))


def op_addr(P):
    a = OA
    P('v_lshrrev_b32 v%d, 5, v0' % a)
    P('v_lshl_add_u32 v%d, v%d, 9, v%d' % (a, a, vTR))
    P('v_add_u32 v%d, 0x%x, v%d' % (a, RING1, a))
    P('s_sub_u32 s%d, s%d, s%d' % (sT0, sGG, sWL))
    for i in range(4):
        P('s_add_u32 s%d, s%d, %d' % (sT1, sT0, i))
        P('s_and_b32 s%d, s%d, 3' % (sT1, sT1))
        P('s_lshl_b32 s%d, s%d, 6' % (sT1, sT1))
        P('v_add_u32 v%d, s%d, v%d' % (vOA + i, sT1, a))
    P('v_add_u32 v%d, 0x100, v%d' % (vOA + 4, a))


def quad_items(q, rnd, lds, irregular=False):
    pre = ['s_lshl1_add_u32 s%d, s%d, %d' % (sT1, sU, q),
           's_and_b32 s%d, s%d, 7' % (sT1, sT1),
           's_mul_i32 s%d, s%d, %d' % (sT1, sT1, 64 * 1280),
           's_add_u32 s%d, s%d, s%d' % (sT1, sT1, sWOB)]
    if rnd:
        pre.append('s_add_u32 s%d, s%d, 0x%x' % (sT1, sT1, 2048 * 1280))
    pre.append('s_add_u32 s%d, s%d, 0x%x' % (sT3, sW5K, lds))
    if irregular:
        pre += ['s_cmp_eq_u32 s%d, 0' % sWL, 's_cselect_b32 s%d, 0x%x, s%d' % (sT3, 8 * 5120, sT3)]
    it = []
    for i in range(5):
        it.append((pre if i == 0 else []) + [
            's_add_u32 m0, s%d, %d' % (sT3, 1024 * i),
            'buffer_load_dwordx4 v%d, %s, s%d offen lds' % (vWD + i, sr(WO_, 4), sT1)])
    return it


def o_items(n0, n1, rnd):
    it = []
    for n in range(n0, n1):
        pre = []
        if n == n0 or (n & 3) == 0:
            pre = ['s_add_u32 s%d, s%d, %d' % (sT2, sU, n >> 3),
                   's_and_b32 s%d, s%d, 3' % (sT2, sT2),
                   's_lshl_b32 s%d, s%d, 15' % (sT2, sT2),
                   's_add_u32 s%d, s%d, s%d' % (sT2, sT2, sOB),
                   's_add_u32 s%d, s%d, 0x%x' % (sT2, sT2, rnd * 16 * 32768 + (n & 4) * 1024)]
        it.append(pre + ['buffer_load_dwordx4 %s, v%d, %s, s%d offen offset:%d sc1' % (
            vr(OB + 4 * n, 4), vL16, sr(WS_, 4), sT2, 1024 * (n & 3))])
    return it


def op_slots(P, steps, off, zero0):
    for a in range(5):
        for x in tr(OA + 4 * a, vOA + a, off(steps[0]), 1280):
            P(x)
    slots = []
    for j, n in enumerate(steps):
        for a in range(5):
            s = [mfma32(ACC + 16 * a, OA + 4 * a, OB + 4 * n, '0' if zero0 and n == 0 else None)]
            if j + 1 < len(steps):
                s += tr(OA + 4 * a, vOA + a, off(steps[j + 1]), 1280)
            slots.append(s)
    return slots


POS2 = [8, 13, 14, 15] + list(range(16, 24)) + list(range(28, 32)) + list(range(0, 8)) + list(range(24, 28)) + list(range(9, 13))


def g0_round2(P):
    ring = lambda q: RING1 + 20480 * (q % 3)
    off1 = lambda n: 20480 * ((n >> 2) % 3) + 5120 * (n & 3)
    ctld = 'buffer_load_dword v%d, v%d, %s, 0 offen sc1' % (vCT, vCA, sr(DBG_, 4))
    f1ld = 'buffer_load_dword v%d, v%d, %s, s%d offen sc1' % (vFL, vFA, sr(WS_, 4), sF1)
    P(ctld)
    emit(P, quad_items(0, 0, ring(0)) + burst_items(11))
    op_addr(P)
    P('s_waitcnt vmcnt(14)')
    set_flag(P, sF1, sU, 0)
    P('s_waitcnt vmcnt(9)')
    stamp(P, 22)
    P('s_barrier')
    plan = {10: (range(0, 4), lambda: [[f1ld]] + quad_items(1, 0, ring(1)) + quad_items(2, 0, ring(2))),
            11: (range(4, 8), lambda: o_items(8, 16, 0) + quad_items(3, 0, ring(3))),
            12: (range(8, 16), lambda: o_items(16, 24, 0) + quad_items(4, 0, ring(4))),
            13: (range(16, 20), lambda: o_items(24, 28, 0) + quad_items(5, 0, ring(5)) + quad_items(6, 0, ring(6))),
            14: (range(20, 28), lambda: o_items(28, 32, 0) + quad_items(7, 0, ring(7))),
            15: (range(28, 32), lambda: [])}
    for t in range(10, 16):
        P.reset()
        if t == 10:
            spin(P, 'C', vCT, 16, ctld, True)
        if t == 11:
            spin(P, 'F1', vFL, 1, f1ld, True)
        steps, items = plan[t]
        if t < 15:
            kv = burst_items(t + 2)
        else:
            kv = [x for q in range(4) for x in quad_items(q, 1, POS2[4 * q + 3] * 5120 - 3 * 5120, q == 0)]
        mix(P, op_slots(P, list(steps), off1, True), items() + kv)
        P('s_waitcnt vmcnt(%d)' % len(kv))
        stamp(P, 13 + t)
        P('s_barrier')
    P.reset()
    for q in range(4, 7):
        emit(P, quad_items(q, 1, POS2[4 * q] * 5120))
    for a in range(5):
        P('v_subrev_u32 v%d, 0x%x, v%d' % (vOA + a, RING1 - 8 * 5120, vOA + a))
    P('s_barrier')
    emit(P, quad_items(7, 1, POS2[28] * 5120))
    stamp(P, 29)
    spin(P, 'F2', vFL, 1, 'buffer_load_dword v%d, v%d, %s, s%d offen offset:128 sc1' % (vFL, vFA, sr(WS_, 4), sF1), False)
    P.reset()
    stamp(P, 30)
    emit(P, o_items(0, 32, 1))
    P('s_barrier')
    base = 8
    segs = []
    for n in range(32):
        p = POS2[n]
        if not (base <= p < base + 12):
            nb = p
            segs.append((n, nb - base))
            base = nb
    base_at = {}
    base = 8
    for n in range(32):
        for (m, dlt) in segs:
            if m == n:
                base += dlt
        base_at[n] = base
    for a in range(5):
        for x in tr(OA + 4 * a, vOA + a, 0, 1280):
            P(x)
    for n in range(32):
        for a in range(5):
            P(mfma32(ACC + 16 * a, OA + 4 * a, OB + 4 * n))
            if n + 1 < 32:
                d = base_at[n + 1] - base_at[n]
                if d:
                    P('v_add_u32 v%d, 0x%x, v%d' % (vOA + a, (d * 5120) & 0xffffffff, vOA + a))
                for x in tr(OA + 4 * a, vOA + a, 5120 * (POS2[n + 1] - base_at[n + 1]), 1280):
                    P(x)
    stamp(P, 31)
    hop2(P)


def hop2(P):
    PK = OB
    P('s_lshl_b32 s%d, s%d, 12' % (sT3, sGG))
    P('s_add_u32 s%d, s%d, s%d' % (sT3, sT3, sPT))
    for a in range(1, 5):
        if a < 4:
            P('s_add_u32 s%d, s%d, %d' % (sT0, sGG, a))
            P('s_and_b32 s%d, s%d, 3' % (sT0, sT0))
            P('s_lshl_b32 s%d, s%d, 14' % (sT0, sT0))
        else:
            P('s_lshl_b32 s%d, s%d, 14' % (sT0, sWL))
        P('s_add_u32 s%d, s%d, s%d' % (sT0, sT0, sT3))
        for s in range(2):
            d = PK + 8 * a + 4 * s
            for i in range(4):
                r = ACC + 16 * a + 8 * s + 2 * i
                P('v_cvt_pk_bf16_f32 v%d, v%d, v%d' % (d + i, r, r + 1))
            P('buffer_store_dwordx4 %s, v%d, %s, s%d offen offset:%d sc1' % (
                vr(d, 4), vL16, sr(WS_, 4), sT0, 1024 * s + (2048 if a == 4 else 0)))
    vO = OA
    P('v_and_b32 v%d, 31, v0' % vO)
    P('s_movk_i32 s%d, 1280' % sT0)
    P('v_mul_lo_u32 v%d, v%d, s%d' % (vO, vO, sT0))
    P('v_lshrrev_b32 v%d, 5, v0' % (vO + 1))
    P('v_lshl_add_u32 v%d, v%d, 4, v%d' % (vO, vO + 1, vO))
    P('s_lshl2_add_u32 s%d, s%d, s%d' % (sT0, sB, sWL))
    P('s_mul_i32 s%d, s%d, 40960' % (sXB, sT0))
    P('s_mul_i32 s%d, s%d, 320' % (sT0, sU))
    P('s_add_u32 s%d, s%d, s%d' % (sXB, sXB, sT0))
    P('s_sub_u32 s%d, s%d, s%d' % (sT0, sGG, sWL))
    P('s_and_b32 s%d, s%d, 3' % (sT0, sT0))
    P('s_lshl_b32 s%d, s%d, 6' % (sT0, sT0))
    P('s_add_u32 s%d, s%d, s%d' % (sXK, sXB, sT0))
    P('s_waitcnt vmcnt(0)')
    set_flag(P, sF3, sGG, 0)
    stamp(P, 2)
    spin(P, 'F3', vFL, 1, 'buffer_load_dword v%d, v%d, %s, s%d offen sc1' % (vFL, vFA, sr(WS_, 4), sF3), False)
    P.reset()
    stamp(P, 3)
    P('s_lshl_b32 s%d, s%d, 14' % (sT3, sGG))
    P('s_add_u32 s%d, s%d, s%d' % (sT3, sT3, sPT))
    RX = OB + 40
    for ex in range(2):
        if ex:
            P('s_cmp_lg_u32 s%d, s%d' % (sGG, sWL))
            P('s_cbranch_scc1 H2_NOX')
        for a in range(1, 4):
            P('s_add_u32 s%d, s%d, %d' % (sT0, sGG, a))
            P('s_and_b32 s%d, s%d, 3' % (sT0, sT0))
            P('s_lshl_b32 s%d, s%d, 12' % (sT0, sT0))
            P('s_add_u32 s%d, s%d, s%d' % (sT0, sT0, sT3))
            for s in range(2):
                P('buffer_load_dwordx4 %s, v%d, %s, s%d offen offset:%d sc1' % (
                    vr(RX + 24 * ex + 8 * (a - 1) + 4 * s, 4), vL16, sr(WS_, 4), sT0, 1024 * s + 2048 * ex))
    P.label('H2_NOX')
    P('s_waitcnt vmcnt(0)')
    for ex in range(2):
        if ex:
            P('s_cmp_lg_u32 s%d, s%d' % (sGG, sWL))
            P('s_cbranch_scc1 H2_END')
        A = ACC + 64 * ex
        for s in range(2):
            for a in range(3):
                for i in range(4):
                    r = RX + 24 * ex + 8 * a + 4 * s + i
                    t = PK + 2 * i
                    P('v_lshlrev_b32 v%d, 16, v%d' % (t, r))
                    P('v_and_b32 v%d, 0xffff0000, v%d' % (t + 1, r))
                for i in range(8):
                    P('v_add_f32 v%d, v%d, v%d' % (A + 8 * s + i, PK + i, A + 8 * s + i))
            d = PK + 8 + 8 * ex + 4 * s
            for i in range(4):
                P('v_cvt_pk_bf16_f32 v%d, v%d, v%d' % (d + i, A + 8 * s + 2 * i, A + 8 * s + 2 * i + 1))
            P('buffer_store_dwordx4 %s, v%d, %s, s%d offen offset:%d' % (
                vr(d, 4), vO, sr(OUT_, 4), sXB if ex else sXK, 32 * s + 256 * ex))
    P.label('H2_END')


def kernel():
    P = Prog()
    P.endl = 'K_END'
    prologue(P)
    g1_phase0(P)
    if OPT['pg']:
        P('s_setprio %d' % OPT['pg'])
    g1_round1(P)
    P.reset()
    P('s_setprio %d' % OPT['pa'])
    att_first(P, True)
    P.loop('ATT_LOOP')
    att_full(P, SA, SB, 'A', [(4 - i, 14 + 2 * i) for i in range(4)])
    P('s_sub_u32 s%d, s%d, 1' % (sCNT, sCNT))
    P('s_cmp_eq_u32 s%d, 0' % sCNT)
    P('s_cbranch_scc1 ATT_LAST')
    att_full(P, SB, SA, 'B', [(3 - i, 15 + 2 * i) for i in range(3)])
    P('s_branch ATT_LOOP')
    P.endloop()
    P.label('ATT_LAST')
    att_last(P)
    P('s_cmp_lg_u32 s%d, 0' % sG)
    P('s_cbranch_scc1 G1_FIN')
    P('s_setprio %d' % OPT['pg'])
    g0_round2(P)
    stamp(P, 4)
    stamp_flush(P)
    P('s_endpgm')
    P.label('G1_FIN')
    P('s_waitcnt vmcnt(0)')
    set_flag(P, sF1, sU, 128)
    stamp(P, 22)
    stamp_flush(P)
    P('s_endpgm')
    att_slow(P, SB, 'A')
    att_slow(P, SA, 'B')
    P.label('G0_START')
    P.reset()
    P('s_waitcnt lgkmcnt(0)')
    srds_rest(P)
    stamp_init(P)
    stamp(P, 0)
    setup_common(P)
    g0_phase0(P)
    stamp(P, 1)
    P('s_setprio %d' % OPT['pa'])
    att_first(P, False)
    P('s_branch ATT_LOOP')
    P.label('K_END')
    P('s_endpgm')
    return P.finalize()


def desc(name):
    return '''.p2align 6
.amdhsa_kernel %s
  .amdhsa_next_free_vgpr 256
  .amdhsa_next_free_sgpr 102
  .amdhsa_accum_offset 256
  .amdhsa_group_segment_fixed_size 0
  .amdhsa_kernarg_size 64
  .amdhsa_user_sgpr_count 2
  .amdhsa_user_sgpr_kernarg_segment_ptr 1
  .amdhsa_system_sgpr_workgroup_id_x 1
.end_amdhsa_kernel
''' % name


def main():
    n = NAME + '_kernel'
    t = HDR
    t += '; @launch grid=(256,1,1) block=(512,1,1) lds=163840\n'
    t += '.amdgcn_target "amdgcn-amd-amdhsa--gfx950"\n.text\n'
    t += '.globl %s\n.p2align 8\n.type %s,@function\n%s:\n%s' % (n, n, n, kernel())
    t += '.section .rodata,"a"\n'
    t += desc(n)
    open(sys.argv[1], 'w').write(t)


main()
```

```python
import math
import struct
import sys
from asmgen import Prog, vr, sr, interleave

NAME = 'standalone__gqa_block_cached__near_ridge'
HDR = open('cdna_kernels/%s.s.ref' % NAME).read().split('; @launch')[0]

OPT = dict(ts=0, kv0=0, kv1=4, wlin=0, rot=0, nt=1, noqp=0, noatt=0, nowx=0, nopack=0, pf=0, only=0, tsop=2, slp=8, rct=8, rj=16, pa=0, pl=3, lds2=13)
for a in sys.argv[2:]:
    k, v = a.split('=')
    OPT[k] = int(v)


def f32(x):
    return '0x%08x' % struct.unpack('<I', struct.pack('<f', x))[0]


sWG, sW, sWL, sG, sB, sH = 2, 3, 4, 5, 6, 7
X_, K_, V_, WQ_, WO_, OUT_, WS_, DBG_ = 8, 12, 16, 20, 24, 28, 32, 36
sKV = 40
sSLOT = 41
sCNT = 43
sC = 44
sWL1K = 45
sT0, sT1, sT2, sT3 = 46, 47, 48, 49
sWROW = 50
sXK = 51
sXB = 52
sDLT = 53
sASL = 54
sRING = 55
sOB = 56
sKT = 57
sOO, sWO = 96, 97
sR1, sR2 = 98, 99
sFLP, sFLC = 100, 101
sUB1, sUB2 = 58, 59
sTS = 60
sTSO = 62
SLOT = 32768
XR = 65536
WR = 65536 + 49152
B1, B0 = 98304, 131072
FLG = 163840 - 256
WS_O = 0
WS_WP = 16 << 20
WS_FL = 23 << 20
WS_TS = 24 << 20
WS_SIZE = 32 << 20
vL, vOK, vOV, vOW, vOX = 0, 1, 2, 3, 4
vTR = 5
vWA = 9
vOST = 13
vT0, vT1 = 14, 15
ACC = 16
Q = 80
WF1 = 80
XF = 96
S = 112
KF = 144
VF = 176
vKC = 208
vVC = 216
vM, vLS, vAL, vMX, vMY, vLS2 = 220, 221, 222, 223, 224, 225
PP = 240
vFA, vFL = 226, 227


def srd(P, d, p, size):
    P('s_mov_b32 s%d, s%d' % (d, p))
    P('s_mov_b32 s%d, s%d' % (d + 1, p + 1))
    P('s_mov_b32 s%d, 0x%x' % (d + 2, size))
    P('s_mov_b32 s%d, 0x20000' % (d + 3))


def prologue(P, ngrid):
    P('s_cmp_ge_u32 s2, %d' % ngrid)
    P('s_cbranch_scc1 %s' % P.endl)
    P('s_load_dwordx16 s[64:79], s[0:1], 0')
    P('v_lshrrev_b32 v1, 6, v0')
    P('v_and_b32 v0, 63, v0')
    P('v_readfirstlane_b32 s%d, v1' % sW)
    P('s_and_b32 s%d, s%d, 3' % (sWL, sW))
    P('s_lshr_b32 s%d, s%d, 2' % (sG, sW))
    P('s_lshl_b32 s%d, s%d, 10' % (sWL1K, sWL))
    P('s_waitcnt lgkmcnt(0)')
    srd(P, X_, 64, 16 * 128 * 640 * 2)
    srd(P, K_, 66, 1 << 26)
    srd(P, V_, 68, 1 << 26)
    srd(P, WQ_, 70, 640 * 4096 * 2)
    srd(P, WO_, 72, 640 * 4096 * 2)
    srd(P, OUT_, 74, 16 * 128 * 640 * 2)
    srd(P, DBG_, 76, 256)
    srd(P, WS_, 78, WS_SIZE)


def stamp(P, idx):
    if not OPT['ts']:
        return
    P('s_memrealtime s[%d:%d]' % (sTS, sTS + 1))
    P('s_waitcnt lgkmcnt(0)')
    P('s_mov_b32 s%d, s%d' % (64 + idx, sTS))


def stamp_if(P, pairs):
    if not OPT['ts']:
        return
    P('s_memrealtime s[%d:%d]' % (sTS, sTS + 1))
    P('s_waitcnt lgkmcnt(0)')
    for c, idx in pairs:
        P('s_cmp_eq_u32 s%d, %d' % (sCNT, c))
        P('s_cselect_b32 s%d, s%d, s%d' % (64 + idx, sTS, 64 + idx))


def stamp_init(P):
    if OPT['ts']:
        for i in range(32):
            P('s_mov_b32 s%d, -1' % (64 + i))


def stamp_flush(P):
    if not OPT['ts']:
        return
    P('v_mov_b32 v%d, 0' % vT1)
    for i in range(32):
        P('v_mov_b32 v%d, s%d' % (vT0, 64 + i))
        P('buffer_store_dword v%d, v%d, %s, s%d offen offset:%d' % (vT0, vT1, sr(WS_, 4), sTSO, i * 4))


def dma(P, voff, rs, soff, steps, m0, n, nt=False, tag=None):
    for i in range(n):
        if i == 0:
            m0(P)
        else:
            P('s_add_u32 m0, m0, 0x1000')
        P('buffer_load_dwordx4 v%d, %s, s%d offen%s lds' % (voff, sr(rs, 4), soff, ' nt' if nt else ''), tag=tag)
        steps(P)


def load_w(P, dst, n):
    if OPT['nowx']:
        return
    def step(P):
        P('s_add_u32 s%d, s%d, 0x%x' % (sWROW, sWROW, 0x1000 if OPT['wlin'] else 0x20000))
        P('s_cmp_eq_u32 s%d, 0x%x' % (sWROW, 0x28000 if OPT['wlin'] else 0x500000))
        P('s_cselect_b32 s%d, 0, s%d' % (sWROW, sWROW))
    dma(P, vOW, WQ_, sWROW, step, lambda P: P('s_add_u32 m0, s%d, 0x%x' % (sWL1K, dst)), n)


def load_x(P, dst):
    if OPT['nowx']:
        return
    P('s_add_u32 s%d, s%d, s%d' % (sT0, sXB, sXK))
    dma(P, vOX, X_, sT0, lambda P: P('s_add_u32 s%d, s%d, 40960' % (sT0, sT0)),
        lambda P: P('s_add_u32 m0, s%d, 0x%x' % (sWL1K, dst)), 4)
    P('s_add_u32 s%d, s%d, 128' % (sXK, sXK))
    P('s_cmp_eq_u32 s%d, 1280' % sXK)
    P('s_cselect_b32 s%d, 0, s%d' % (sXK, sXK))


def load_kv(P, jump=False, tag=None):
    P('s_add_u32 s%d, s%d, s%d' % (sT0, sKV, sKT))
    dma(P, vOK, K_, sT0, lambda P: P('s_add_u32 s%d, s%d, 0x1000' % (sT0, sT0)),
        lambda P: P('s_mov_b32 m0, s%d' % sSLOT), 4, nt=OPT['nt'], tag=tag)
    P('s_add_u32 s%d, s%d, s%d' % (sT0, sKV, sKT))
    dma(P, vOV, V_, sT0, lambda P: P('s_add_u32 s%d, s%d, 0x1000' % (sT0, sT0)),
        lambda P: P('s_add_u32 m0, s%d, 0x4000' % sSLOT), 4, nt=OPT['nt'], tag=tag)
    P('s_add_u32 s%d, s%d, 0x4000' % (sKT, sKT))
    P('s_and_b32 s%d, s%d, 0x1ffff' % (sKT, sKT))
    if jump:
        P('s_add_u32 s%d, s%d, 0x%x' % (sKV, sKV, 16 * 131072))
    P('s_add_u32 s%d, s%d, 0x8000' % (sSLOT, sSLOT))
    P('s_cmp_ge_u32 s%d, 0x18000' % sSLOT)
    P('s_cselect_b32 s%d, s%d, s%d' % (sSLOT, sWL1K, sSLOT))


def mfma32(d, a, b, c=None):
    return 'v_mfma_f32_32x32x16_bf16 %s, %s, %s, %s' % (vr(d, 16), vr(a, 4), vr(b, 4), vr(d, 16) if c is None else c)


def tr(dst, addr, off):
    return ['ds_read_b64_tr_b16 %s, v%d offset:%d' % (vr(dst, 2), addr, off),
            'ds_read_b64_tr_b16 %s, v%d offset:%d' % (vr(dst + 2, 2), addr, off + 1024)]


def cvt_q(P):
    for i in range(32):
        P('v_cvt_pk_bf16_f32 v%d, v%d, v%d' % (Q + i, ACC + 2 * i, ACC + 2 * i + 1))


def setup_a(P):
    P('s_and_b32 s%d, s2, 1' % sT0)
    P('s_lshl_b32 s%d, s%d, 3' % (sT0, sT0))
    P('s_lshr_b32 s%d, s2, 3' % sT1)
    P('s_and_b32 s%d, s%d, 7' % (sT2, sT1))
    P('s_add_u32 s%d, s%d, s%d' % (sB, sT0, sT2))
    P('s_and_b32 s%d, s2, 6' % sT0)
    P('s_lshl_b32 s%d, s%d, 1' % (sT0, sT0))
    P('s_lshr_b32 s%d, s2, 6' % sT3)
    P('s_add_u32 s%d, s%d, s%d' % (sH, sT0, sT3))
    P('s_mul_i32 s%d, s%d, 5' % (sT3, sT3))
    P('s_add_u32 s%d, s%d, 1' % (sT3, sT3))
    P('s_lshr_b32 s%d, s%d, 1' % (sT3, sT3))
    P('s_add_u32 s%d, s%d, s%d' % (sT3, sT3, sT2))
    P('s_sub_u32 s%d, s%d, 10' % (sT0, sT3))
    P('s_cmp_ge_u32 s%d, 10' % sT3)
    P('s_cselect_b32 s%d, s%d, s%d' % (sT3, sT0, sT3))
    P('s_lshl_b32 s%d, s%d, %d' % (sWROW, sT3, 14 if OPT['wlin'] else 19))
    P('s_lshl_b32 s%d, s%d, 7' % (sXK, sT3))
    P('s_mul_i32 s%d, s%d, 163840' % (sXB, sB))
    P('s_lshl_b32 s%d, s%d, 5' % (sT0, sB))
    P('s_add_u32 s%d, s%d, s%d' % (sT0, sT0, sH))
    P('s_lshl_b32 s%d, s%d, 17' % (sKV, sT0))
    P('s_lshl_b32 s%d, s%d, 4' % (sT1, sG))
    P('s_add_u32 s%d, s%d, s%d' % (sT1, sT1, sH))
    P('s_lshl_b32 s%d, s%d, 14' % (sOB, sT1))
    P('s_lshl_b32 s%d, s%d, 1' % (sT0, sB))
    P('s_lshr_b32 s%d, s%d, 1' % (sT1, sWL))
    P('s_add_u32 s%d, s%d, s%d' % (sT0, sT0, sT1))
    P('s_lshl_b32 s%d, s%d, 19' % (sT1, sT0))
    P('s_add_u32 s%d, s%d, s%d' % (sOB, sOB, sT1))
    P('s_and_b32 s%d, s%d, 1' % (sT2, sWL))
    P('s_lshl_b32 s%d, s%d, 11' % (sT1, sT2))
    P('s_add_u32 s%d, s%d, s%d' % (sOB, sOB, sT1))
    P('s_lshl_b32 s%d, s%d, 7' % (sFLP, sT0))
    P('s_lshl_b32 s%d, s%d, 3' % (sT1, sH))
    P('s_add_u32 s%d, s%d, s%d' % (sFLP, sFLP, sT1))
    P('s_lshl_b32 s%d, s%d, 2' % (sT1, sT2))
    P('s_add_u32 s%d, s%d, s%d' % (sFLP, sFLP, sT1))
    P('s_add_u32 s%d, s%d, 0x%x' % (sFLP, sFLP, WS_FL))
    P('s_and_b32 s%d, s2, 7' % sT0)
    P('s_lshl_b32 s%d, s%d, 2' % (sT0, sT0))
    P('s_bfe_u32 s%d, s2, 0x20003' % sT2)
    P('s_add_u32 s%d, s%d, s%d' % (sT0, sT0, sT2))
    P('s_lshl_b32 s%d, s%d, 19' % (sOO, sT0))
    P('s_lshl_b32 s%d, s%d, 7' % (sFLC, sT0))
    P('s_add_u32 s%d, s%d, 0x%x' % (sFLC, sFLC, WS_FL))
    P('s_lshr_b32 s%d, s2, 5' % sT1)
    P('s_mul_i32 s%d, s%d, %d' % (sWO, sT1, 128 * 5120))
    P('s_add_u32 s%d, s%d, 0x%x' % (sWO, sWO, WS_WP))
    P('s_lshl_b32 s%d, s%d, 1' % (sR2, sT2))
    P('s_add_u32 s%d, s%d, s%d' % (sR2, sR2, sT1))
    P('s_mul_i32 s%d, s%d, %d' % (sUB1, sT1, OPT['rct']))
    P('s_mul_i32 s%d, s%d, %d' % (sT1, sT2, OPT['rj']))
    P('s_add_u32 s%d, s%d, s%d' % (sUB1, sUB1, sT1))
    P('s_mul_i32 s%d, s%d, 20' % (sT1, sWL))
    P('s_add_u32 s%d, s%d, 44' % (sT1, sT1))
    P('s_add_u32 s%d, s%d, s%d' % (sUB1, sUB1, sT1))
    P('s_and_b32 s%d, s%d, 1' % (sT2, sT2))
    P('s_lshl_b32 s%d, s%d, 2' % (sT2, sT2))
    P('s_xor_b32 s%d, s%d, s%d' % (sR1, sW, sT2))
    P('s_lshl_b32 s%d, s%d, 3' % (sUB2, sR1))
    P('s_add_u32 s%d, s%d, 64' % (sUB2, sUB2))
    P('s_mov_b32 s%d, s%d' % (sSLOT, sWL1K))
    if OPT['rot']:
        P('s_lshr_b32 s%d, s2, 3' % sT0)
        P('s_add_u32 s%d, s%d, s2' % (sT0, sT0))
        P('s_and_b32 s%d, s%d, 7' % (sT0, sT0))
        P('s_lshl_b32 s%d, s%d, 14' % (sKT, sT0))
    else:
        P('s_mov_b32 s%d, 0' % sKT)
    P('s_mov_b32 s%d, %s' % (sC, f32(math.log2(math.e) / math.sqrt(128.0))))
    if OPT['ts']:
        P('s_lshl_b32 s%d, s2, 3' % sTSO)
        P('s_add_u32 s%d, s%d, s%d' % (sTSO, sTSO, sW))
        P('s_lshl_b32 s%d, s%d, 7' % (sTSO, sTSO))
        P('s_add_u32 s%d, s%d, 0x%x' % (sTSO, sTSO, WS_TS))
    a, b_, c, d = 20, 21, 22, 23
    P('v_lshrrev_b32 v%d, 4, v0' % a)
    P('s_lshl_b32 s%d, s%d, 2' % (sT0, sWL))
    P('v_add_u32 v%d, s%d, v%d' % (b_, sT0, a))
    P('v_and_b32 v%d, 15, v0' % c)
    P('v_xor_b32 v%d, v%d, v%d' % (d, c, b_))
    P('v_lshlrev_b32 v%d, 4, v%d' % (d, d))
    P('v_lshl_add_u32 v%d, v%d, 8, v%d' % (vOK, b_, d))
    P('v_lshlrev_b32 v%d, 2, v%d' % (d, a))
    P('v_xor_b32 v%d, v%d, v%d' % (d, c, d))
    P('v_lshlrev_b32 v%d, 4, v%d' % (d, d))
    P('v_lshl_add_u32 v%d, v%d, 8, v%d' % (vOV, b_, d))
    P('v_lshl_add_u32 v%d, v%d, %d, v%d' % (vOW, b_, 8 if OPT['wlin'] else 13, d))
    P('s_mul_i32 s%d, s%d, %d' % (sT0, sH, 163840 if OPT['wlin'] else 256))
    P('v_add_u32 v%d, s%d, v%d' % (vOW, sT0, vOW))
    P('s_and_b32 s%d, s%d, 1' % (sT0, sWL))
    P('s_lshl_b32 s%d, s%d, 2' % (sT0, sT0))
    P('v_add_u32 v%d, s%d, v%d' % (d, sT0, a))
    P('v_and_b32 v%d, 7, v0' % c)
    P('v_xor_b32 v%d, v%d, v%d' % (d, c, d))
    P('v_lshlrev_b32 v%d, 4, v%d' % (d, d))
    P('v_lshrrev_b32 v%d, 3, v0' % c)
    P('s_lshl_b32 s%d, s%d, 3' % (sT0, sWL))
    P('v_add_u32 v%d, s%d, v%d' % (c, sT0, c))
    P('s_movk_i32 s%d, 1280' % sT0)
    P('v_mul_lo_u32 v%d, v%d, s%d' % (c, c, sT0))
    P('v_add_u32 v%d, v%d, v%d' % (vOX, c, d))
    P('v_lshrrev_b32 v%d, 5, v0' % a)
    P('v_bfe_u32 v%d, v0, 2, 2' % b_)
    P('v_lshl_add_u32 v%d, v%d, 3, v%d' % (a, a, b_))
    P('v_lshlrev_b32 v%d, 8, v%d' % (a, a))
    P('v_lshl_add_u32 v%d, v%d, 6, v%d' % (a, b_, a))
    P('v_bfe_u32 v%d, v0, 4, 1' % c)
    P('v_lshl_add_u32 v%d, v%d, 5, v%d' % (a, c, a))
    P('v_and_b32 v%d, 1, v0' % c)
    P('v_lshl_add_u32 v%d, v%d, 4, v%d' % (a, c, a))
    P('v_bfe_u32 v%d, v0, 1, 1' % c)
    P('v_lshl_add_u32 v%d, v%d, 3, v%d' % (a, c, a))
    for mt in range(4):
        P('v_xor_b32 v%d, %d, v%d' % (vTR + mt, mt << 6, a))
    P('v_bfe_u32 v%d, v0, 4, 1' % a)
    P('v_lshlrev_b32 v%d, 10, v%d' % (a, a))
    P('v_lshrrev_b32 v%d, 5, v0' % b_)
    P('v_lshl_add_u32 v%d, v%d, 8, v%d' % (a, b_, a))
    P('v_and_b32 v%d, 15, v0' % b_)
    P('v_lshl_add_u32 v%d, v%d, 4, v%d' % (vOST, b_, a))


def xaddr(P, dst):
    a, b_ = vT0, vT1
    P('v_and_b32 v%d, 31, v0' % a)
    P('v_bfe_u32 v%d, v0, 1, 3' % b_)
    P('v_lshlrev_b32 v%d, 7, v%d' % (a, a))
    P('v_lshl_add_u32 v%d, v%d, 4, v%d' % (a, b_, a))
    P('v_lshrrev_b32 v%d, 5, v0' % b_)
    P('v_lshlrev_b32 v%d, 4, v%d' % (b_, b_))
    P('v_xor_b32 v%d, v%d, v%d' % (a, a, b_))
    P('s_lshl_b32 s%d, s%d, 12' % (sT0, sWL))
    P('s_add_u32 s%d, s%d, 0x%x' % (sT0, sT0, XR))
    P('v_add_u32 v%d, s%d, v%d' % (a, sT0, a))
    for kk in range(4):
        P('v_xor_b32 v%d, %d, v%d' % (dst + kk, kk << 5, a))


def g0_phase0(P):
    WFa, XFa = 112, 144
    wc, xc = 208, 212
    xaddr(P, xc)
    for mt in range(4):
        P('v_add_u32 v%d, 0x%x, v%d' % (wc + mt, WR, vTR + mt))
    for i in range(64):
        P('v_mov_b32 v%d, 0' % (ACC + i))
    P('s_mov_b32 s%d, 0' % sRING)
    P('s_mov_b32 s%d, 10' % sCNT)

    def reads(ks):
        buf = ks & 1
        r = ['ds_read_b128 %s, v%d' % (vr(XFa + 4 * buf, 4), xc + ks)]
        for mt in range(4):
            r += tr(WFa + 16 * buf + 4 * mt, wc + mt, ks * 4096)
        return r

    def mm(ks):
        buf = ks & 1
        return [mfma32(ACC + 16 * mt, WFa + 16 * buf + 4 * mt, XFa + 4 * buf) for mt in range(4)]
    P('s_barrier')
    for x in reads(0):
        P(x)
    P.loop('QP0_LOOP')
    for ks in range(3):
        for x in interleave(mm(ks), reads(ks + 1), per=3):
            P(x)
    P('s_add_u32 s%d, s%d, 1' % (sRING, sRING))
    P('s_cmp_eq_u32 s%d, 3' % sRING)
    P('s_cselect_b32 s%d, 0, s%d' % (sRING, sRING))
    P('s_mov_b32 s%d, 0x4000' % sDLT)
    P('s_cselect_b32 s%d, 0xffff8000, s%d' % (sDLT, sDLT))
    for i in range(8):
        P('v_add_u32 v%d, s%d, v%d' % (wc + i, sDLT, wc + i))
    P('s_waitcnt lgkmcnt(0)')
    P('s_barrier')
    for x in interleave(mm(3), reads(0), per=3):
        P(x)
    P('s_sub_u32 s%d, s%d, 1' % (sCNT, sCNT))
    P('s_cmp_lg_u32 s%d, 0' % sCNT)
    P('s_cbranch_scc1 QP0_LOOP')
    P.endloop()
    P('s_waitcnt lgkmcnt(0)')
    cvt_q(P)


def g1_phase0(P):
    xc = ACC
    xaddr(P, xc)
    for mt in range(4):
        P('v_add_u32 v%d, 0x%x, v%d' % (vWA + mt, B1, vTR + mt))
    out = []

    def stage(i):
        load_w(P, WR + 16384 * (i % 3), 4)
        load_x(P, XR + 16384 * (i % 3))
        out.append(('st%d' % i, 0 if OPT['nowx'] else 8))

    def kv(n):
        load_kv(P)
        out.append(('kv%d' % n, 8))

    def wait(names):
        idx = max([i for i, o in enumerate(out) if o[0] in names] + [-1])
        n = sum(o[1] for o in out[idx + 1:])
        P('s_waitcnt vmcnt(%d) lgkmcnt(0)' % n)
        del out[:idx + 1]
    stage(0)
    P('v_mov_b32 v%d, 0' % vT0)
    P('v_lshlrev_b32 v%d, 12, v0' % vT1)
    P('s_mov_b64 exec, 3')
    P('buffer_store_dword v%d, v%d, %s, s%d offen sc1' % (vT0, vT1, sr(WS_, 4), sFLP))
    P('s_mov_b64 exec, -1')
    out.append(('fl', 1))
    if OPT['kv0'] < 0:
        kv(0)
    stage(1)
    wait(['st0'])
    stamp(P, 5)
    P('s_barrier')
    for i in range(10):
        if i + 2 <= 9:
            stage(i + 2)
        if i == 9:
            P('v_add_u32 v%d, 0x%x, v%d' % (vOW, 16 * 163840 if OPT['wlin'] else 0x1000, vOW))
            load_w(P, B0, 5)
            out.append(('w0', 0 if OPT['nowx'] else 5))
        if i == OPT['kv0']:
            kv(0)
        if i == OPT['kv1']:
            kv(1)
        for kk in range(4):
            P('ds_read_b128 %s, v%d offset:%d' % (vr(XF + 16 * i + 4 * kk, 4), xc + kk, 16384 * (i % 3)))
        wait(['st%d' % (i + 1)] if i < 9 else ['w0', 'kv0'])
        if OPT['ts'] == 1:
            stamp(P, 6 + i)
        P('s_barrier')
    return out


def g1_round1(P, out):
    PK = XF
    for t in range(8):
        if OPT['ts'] == 2 and t in (5, 6):
            stamp(P, 24 + 3 * (t - 5))
        if t == 1:
            P('v_mov_b32 v%d, 0' % vT0)
            P('v_lshlrev_b32 v%d, 2, v0' % vT1)
            P('v_add_u32 v%d, 0x%x, v%d' % (vT1, FLG, vT1))
            P('ds_write_b32 v%d, v%d' % (vT1, vT0))
        if t == 4:
            P('s_cmp_lg_u32 s%d, 0' % sWL)
            P('s_cbranch_scc1 NO_CNT')
            P('s_and_b32 s%d, s2, 7' % sT0)
            P('s_lshl_b32 s%d, s%d, 5' % (sT0, sT0))
            P('v_mov_b32 v%d, 1' % vT0)
            P('v_mov_b32 v%d, 0' % vT1)
            P('s_mov_b64 exec, 1')
            P('buffer_atomic_add v%d, v%d, %s, s%d offen' % (vT0, vT1, sr(DBG_, 4), sT0))
            P('s_mov_b64 exec, -1')
            P.label('NO_CNT')
        if t == 7:
            P('v_and_b32 v%d, 7, v0' % (XF + 1))
            P('v_lshlrev_b32 v%d, 5, v%d' % (XF + 1, XF + 1))
            P('buffer_load_dword v%d, v%d, %s, 0 offen sc1' % (XF, XF + 1, sr(DBG_, 4)))
        if t < 7:
            load_w(P, B0 if (t + 1) % 2 == 0 else B1, 5)
        if t == 2 and not OPT['nopack']:
            P('v_lshrrev_b32 v%d, 4, v0' % vT0)
            P('s_movk_i32 s%d, 10240' % sT0)
            P('v_mul_lo_u32 v%d, v%d, s%d' % (vT0, vT0, sT0))
            P('v_and_b32 v%d, 15, v0' % vT1)
            P('v_lshl_add_u32 v%d, v%d, 1, v%d' % (vT0, vT1, vT0))
            P('s_lshr_b32 s%d, s2, 1' % sT0)
            P('s_mul_i32 s%d, s%d, 40960' % (sT0, sT0))
            P('s_and_b32 s%d, s2, 1' % sT1)
            P('s_lshl_b32 s%d, s%d, 2' % (sT1, sT1))
            P('s_add_u32 s%d, s%d, s%d' % (sT1, sT1, sWL))
            P('s_mul_i32 s%d, s%d, 160' % (sT2, sT1))
            P('s_add_u32 s%d, s%d, s%d' % (sT0, sT0, sT2))
            for j in range(8):
                for a in range(5):
                    P('buffer_load_ushort v%d, v%d, %s, s%d offen offset:%d' % (
                        PK + 20 * (j & 1) + 4 * a + (j >> 1), vT0, sr(WO_, 4), sT0, 32 * a + 1280 * (j & 1)))
                if j & 1:
                    P('s_add_u32 s%d, s%d, 2560' % (sT0, sT0))
        if t == 3 and not OPT['nopack']:
            for i in range(20):
                P('v_lshl_or_b32 v%d, v%d, 16, v%d' % (PK + i, PK + 20 + i, PK + i))
            P('s_lshr_b32 s%d, s2, 1' % sT0)
            P('s_and_b32 s%d, s2, 1' % sT1)
            P('s_lshl_b32 s%d, s%d, 2' % (sT1, sT1))
            P('s_add_u32 s%d, s%d, s%d' % (sT1, sT1, sWL))
            P('s_lshl_b32 s%d, s%d, 7' % (sT1, sT1))
            P('s_add_u32 s%d, s%d, s%d' % (sT0, sT0, sT1))
            P('s_mul_i32 s%d, s%d, 5120' % (sT0, sT0))
            P('s_add_u32 s%d, s%d, 0x%x' % (sT0, sT0, WS_WP))
            P('v_lshlrev_b32 v%d, 4, v0' % vT0)
            for a in range(5):
                if a == 4:
                    P('s_add_u32 s%d, s%d, 0x1000' % (sT0, sT0))
                P('buffer_store_dwordx4 %s, v%d, %s, s%d offen offset:%d sc1' % (
                    vr(PK + 4 * a, 4), vT0, sr(WS_, 4), sT0, (1024 * a) & 4095))
        if OPT['ts'] == 2 and t in (5, 6):
            stamp(P, 25 + 3 * (t - 5))
        load_kv(P, jump=(t == 5))
        if OPT['ts'] == 2 and t in (5, 6):
            stamp(P, 26 + 3 * (t - 5))
        base = (B0 if t % 2 == 0 else B1) - B1
        for mt in range(4):
            for x in tr(WF1 + 4 * mt, vWA + mt, base):
                P(x)
        for j in range(0 if OPT['noqp'] else 5):
            for mt in range(4):
                P(mfma32(ACC + 16 * mt, WF1 + 4 * mt, XF + 4 * (5 * t + j), '0' if t == 0 and j == 0 else None))
                if j < 4:
                    for x in tr(WF1 + 4 * mt, vWA + mt, base + 4096 * (j + 1)):
                        P(x)
        if t == 7:
            P('v_cmp_ne_u32 vcc, 32, v%d' % XF)
            P('s_mov_b32 s%d, 0x40000' % sT2)
            P('s_cbranch_vccz CNT_OK')
            P.label('CNT_SPIN')
            P('s_sub_u32 s%d, s%d, 1' % (sT2, sT2))
            P('s_cbranch_scc1 CNT_OK')
            P('s_sleep 2')
            P('buffer_load_dword v%d, v%d, %s, 0 offen sc1' % (XF, XF + 1, sr(DBG_, 4)))
            P('s_waitcnt vmcnt(0)')
            P('v_cmp_ne_u32 vcc, 32, v%d' % XF)
            P('s_cbranch_vccnz CNT_SPIN')
            P.label('CNT_OK')
            cvt_q(P)
            P('s_mov_b32 s%d, 2' % sASL)
            att_setup(P, 2)
        if OPT['ts'] == 1:
            stamp(P, 24 + t)
        P('s_waitcnt vmcnt(%d)' % (8 if t < 7 else 0))
        stamp(P, 16 + t)
        if t < 7:
            P('s_barrier')


def att_setup(P, slot):
    a, b_ = vT0, vT1
    P('v_and_b32 v%d, 19, v0' % a)
    P('v_bfe_u32 v%d, v0, 2, 1' % b_)
    P('v_lshl_add_u32 v%d, v%d, 3, v%d' % (a, b_, a))
    P('v_bfe_u32 v%d, v0, 3, 1' % b_)
    P('v_lshl_add_u32 v%d, v%d, 2, v%d' % (a, b_, a))
    P('v_lshrrev_b32 v%d, 5, v0' % b_)
    P('v_xor_b32 v%d, v%d, v%d' % (b_, b_, a))
    P('v_and_b32 v%d, 15, v%d' % (b_, b_))
    P('v_lshlrev_b32 v%d, 4, v%d' % (b_, b_))
    P('v_lshl_add_u32 v%d, v%d, 8, v%d' % (a, a, b_))
    P('v_add_u32 v%d, 0x%x, v%d' % (a, slot * SLOT, a))
    for ks in range(8):
        P('v_xor_b32 v%d, 0x%x, v%d' % (vKC + ks, ks << 5, a))
    for mt in range(4):
        P('v_add_u32 v%d, 0x%x, v%d' % (vVC + mt, slot * SLOT + 16384, vTR + mt))
    for i in range(64):
        P('v_mov_b32 v%d, 0' % (ACC + i))
    P('v_mov_b32 v%d, 0xff800000' % vM)
    P('v_mov_b32 v%d, 0' % vLS)
    P('v_mov_b32 v%d, 0' % vLS2)
    P('s_mov_b32 s%d, 8' % sCNT)
    P('s_lshl_b32 s%d, s%d, 2' % (sT0, sWL))
    P('s_add_u32 s%d, s%d, 0x%x' % (sT0, sT0, FLG))
    P('v_mov_b32 v%d, s%d' % (vFA, sT0))


def att(P):
    def kread(kt, ks):
        return 'ds_read_b128 %s, v%d offset:%d' % (vr(KF + 4 * ks, 4), vKC + ks, 8192 * kt)

    def vread(kp, mt):
        return tr(VF + 4 * (4 * (kp & 1) + mt), vVC + mt, 4096 * kp)

    def pv(kp, mt):
        return mfma32(ACC + 16 * mt, VF + 4 * (4 * (kp & 1) + mt), PP + 4 * kp)

    def maxes(kt, dst, first):
        s = S + 16 * kt
        r = ['v_max3_f32 v%d, v%d, v%d, v%d' % (dst, s, s + 1, first)]
        for i in range(2, 16, 2):
            r.append('v_max3_f32 v%d, v%d, v%d, v%d' % (dst, s + i, s + i + 1, dst))
        return r

    def expo(kt):
        s = S + 16 * kt
        g = []
        for i in range(0, 16, 2):
            g.append(['v_fma_f32 v%d, v%d, s%d, -v%d' % (s + i, s + i, sC, vMY),
                      'v_fma_f32 v%d, v%d, s%d, -v%d' % (s + i + 1, s + i + 1, sC, vMY),
                      'v_exp_f32 v%d, v%d' % (s + i, s + i),
                      'v_exp_f32 v%d, v%d' % (s + i + 1, s + i + 1)])
        return g

    def cvts(kt):
        s = S + 16 * kt
        return ['v_cvt_pk_bf16_f32 v%d, v%d, v%d' % (PP + 8 * kt + i, s + 2 * i, s + 2 * i + 1) for i in range(8)]

    def sums(kt):
        s = S + 16 * kt
        return ['v_add_f32 v%d, v%d, v%d' % (vLS2 if i & 1 else vLS, s + i, vLS2 if i & 1 else vLS) for i in range(16)]

    def resc(mt):
        return ['v_mul_f32 v%d, v%d, v%d' % (ACC + 16 * mt + i, vAL, ACC + 16 * mt + i) for i in range(16)]

    if OPT['noatt']:
        P.loop('ATT_LOOP')
        P('s_waitcnt vmcnt(0) lgkmcnt(0)')
        P('s_barrier')
        P('s_sub_u32 s%d, s%d, 1' % (sCNT, sCNT))
        P('s_cmp_lg_u32 s%d, 0' % sCNT)
        P('s_cbranch_scc1 ATT_LOOP')
        P.endloop()
        return
    for ks in range(8):
        P(kread(0, ks))
    P.loop('ATT_LOOP')
    for ks in range(8):
        P(mfma32(S, KF + 4 * ks, Q + 4 * ks, '0' if ks == 0 else None))
        P(kread(1, ks))
    mm = [mfma32(S + 16, KF + 4 * ks, Q + 4 * ks, '0' if ks == 0 else None) for ks in range(8)]
    vr0 = [x for kp in range(2) for mt in range(4) for x in vread(kp, mt)]
    mx0 = maxes(0, vMX, vM)
    for ks in range(8):
        P(mm[ks])
        for x in vr0[2 * ks:2 * ks + 2]:
            P(x)
        if ks >= 4:
            for x in mx0[2 * (ks - 4):2 * (ks - 4) + 2]:
                P(x)
    for x in maxes(1, vMX, vMX):
        P(x)
    P('v_mov_b32 v%d, v%d' % (vMY, vMX))
    P('v_permlane32_swap_b32 v%d, v%d' % (vMX, vMY))
    P('v_max_f32 v%d, v%d, v%d' % (vMX, vMX, vMY))
    P('v_sub_f32 v%d, v%d, v%d' % (vAL, vM, vMX))
    P('v_mul_f32 v%d, s%d, v%d' % (vMY, sC, vMX))
    P('v_mul_f32 v%d, s%d, v%d' % (vAL, sC, vAL))
    P('v_mov_b32 v%d, v%d' % (vM, vMX))
    P('v_exp_f32 v%d, v%d' % (vAL, vAL))
    e0, c0 = expo(0), cvts(0)
    for i in range(8):
        for x in e0[i]:
            P(x)
        if i >= 1:
            P(c0[i - 1])
    P('v_mul_f32 v%d, v%d, v%d' % (vLS, vAL, vLS))
    P(c0[7])
    P('v_mul_f32 v%d, v%d, v%d' % (vLS2, vAL, vLS2))
    for x in resc(0):
        P(x)
    e1, c1 = expo(1), cvts(1)
    for mt in range(4):
        P(pv(0, mt))
        for x in vread(2, mt):
            P(x)
        if mt < 3:
            for x in resc(mt + 1):
                P(x)
        else:
            for x in e1[0] + e1[1]:
                P(x)
    for mt in range(4):
        P(pv(1, mt))
        for x in vread(3, mt):
            P(x)
        if mt < 3:
            for x in e1[2 + 2 * mt] + e1[3 + 2 * mt] + c1[2 * mt:2 * mt + 2]:
                P(x)
        else:
            for x in c1[6:8]:
                P(x)
    su = sums(0) + sums(1)
    for mt in range(4):
        P(pv(2, mt))
        for x in su[6 * mt:6 * mt + 6]:
            P(x)
    P('ds_read_b32 v%d, v%d offset:16' % (vFL, vFA))
    P('s_add_u32 s%d, s%d, 1' % (sASL, sASL))
    P('s_cmp_eq_u32 s%d, 3' % sASL)
    P('s_cselect_b32 s%d, 0, s%d' % (sASL, sASL))
    P('s_mov_b32 s%d, 0x8000' % sDLT)
    P('s_cselect_b32 s%d, 0xffff0000, s%d' % (sDLT, sDLT))
    for i in range(12):
        P('v_add_u32 v%d, s%d, v%d' % (vKC + i, sDLT, vKC + i))
    P('s_sub_u32 s%d, 9, s%d' % (sT0, sCNT))
    P('v_mov_b32 v%d, s%d' % (vT0, sT0))
    P('s_cmp_eq_u32 s%d, 0' % sG)
    P('s_waitcnt lgkmcnt(0)')
    P('s_cbranch_scc1 ATT_BAR')
    P('ds_write_b32 v%d, v%d' % (vFA, vT0))
    if OPT['ts'] == 2:
        stamp_if(P, [(8 - i, 6 + i) for i in range(8)])
    P('v_readfirstlane_b32 s%d, v%d' % (sT1, vFL))
    P('s_mov_b32 s%d, 0x400000' % sT2)
    P('s_add_u32 s%d, s%d, s%d' % (sT1, sT1, sCNT))
    P('s_cmp_ge_u32 s%d, 8' % sT1)
    P('s_cbranch_scc1 ATT_GO')
    P.label('ATT_SPIN')
    P('s_sub_u32 s%d, s%d, 1' % (sT2, sT2))
    P('s_cbranch_scc1 ATT_GO')
    P('ds_read_b32 v%d, v%d offset:16' % (vFL, vFA))
    P('s_waitcnt lgkmcnt(0)')
    P('v_readfirstlane_b32 s%d, v%d' % (sT1, vFL))
    P('s_add_u32 s%d, s%d, s%d' % (sT1, sT1, sCNT))
    P('s_cmp_lt_u32 s%d, 8' % sT1)
    P('s_cbranch_scc1 ATT_SPIN')
    P('s_branch ATT_GO')
    P.label('ATT_BAR')
    P('s_barrier')
    P.label('ATT_GO')
    if OPT['ts'] == 2:
        stamp_if(P, [(8 - i, 16 + i) for i in range(8)])
    for mt in range(4):
        P(pv(3, mt))
        P(kread(0, 2 * mt))
        P(kread(0, 2 * mt + 1))
        for x in su[24 + 2 * mt:26 + 2 * mt]:
            P(x)
    P('s_sub_u32 s%d, s%d, 1' % (sCNT, sCNT))
    P('s_cmp_lg_u32 s%d, 0' % sCNT)
    P('s_cbranch_scc1 ATT_LOOP')
    P.endloop()
    P('s_waitcnt lgkmcnt(0)')


def o_store(P):
    P('v_add_f32 v%d, v%d, v%d' % (vLS, vLS, vLS2))
    P('v_mov_b32 v%d, v%d' % (vMY, vLS))
    P('v_permlane32_swap_b32 v%d, v%d' % (vLS, vMY))
    P('v_add_f32 v%d, v%d, v%d' % (vLS, vLS, vMY))
    P('v_rcp_f32 v%d, v%d' % (vLS, vLS))
    for mt in range(4):
        for s in range(2):
            b = ACC + 16 * mt + 8 * s
            for i in range(8):
                P('v_mul_f32 v%d, v%d, v%d' % (b + i, vLS, b + i))
            d = S + 4 * (2 * mt + s)
            for i in range(4):
                P('v_cvt_pk_bf16_f32 v%d, v%d, v%d' % (d + i, b + 2 * i, b + 2 * i + 1))
            P('buffer_store_dwordx4 %s, v%d, %s, s%d offen offset:%d sc1' % (
                vr(d, 4), vOST, sr(WS_, 4), sOB, 512 * s), tag='ost')
        P('s_add_u32 s%d, s%d, 0x1000' % (sOB, sOB))


def kernel_a():
    P = Prog()
    P.endl = 'A_END'
    prologue(P, 256)
    setup_a(P)
    stamp_init(P)
    stamp(P, 0)
    P('s_cmp_lg_u32 s%d, 0' % sG)
    P('s_cbranch_scc1 G1_START')
    g0_phase0(P)
    P('s_waitcnt vmcnt(0)')
    P('s_mov_b32 s%d, 0' % sASL)
    att_setup(P, 0)
    P('s_add_u32 s%d, s%d, 0x%x' % (sKV, sKV, 16 * 131072))
    P('s_add_u32 s%d, s%d, 0x8000' % (sKT, sKT))
    P('s_and_b32 s%d, s%d, 0x1ffff' % (sKT, sKT))
    P('s_add_u32 s%d, s%d, 0x8000' % (sSLOT, sSLOT))
    stamp(P, 1)
    P('s_branch ATT_START')
    P.label('G1_START')
    P.reset()
    out = g1_phase0(P)
    stamp(P, 1)
    g1_round1(P, out)
    stamp(P, 2)
    P('s_barrier')
    P.label('ATT_START')
    P.reset()
    if OPT['pa']:
        P('s_setprio %d' % OPT['pa'])
    att(P)
    stamp(P, 3)
    P('s_cmp_lg_u32 s%d, 0' % sG)
    P('s_cbranch_scc1 G1_FIN')
    P('s_setprio 0')
    op_addr(P)
    P('s_mul_i32 s%d, s%d, 15360' % (sLW, sWL))
    P('s_add_u32 s%d, s%d, 0x18000' % (sLW, sLW))
    P('s_cmp_eq_u32 s%d, 0' % sWL)
    P('s_cbranch_scc1 LOADER')
    o_store(P)
    for i in range(NW):
        op_w(P, i)
    P.wait_vm_tag('ost')
    set_flag(P, 0)
    stamp(P, 4)
    poll(P, 0, 'A')
    stamp(P, 24)
    for i in range(NO):
        op_o(P, i)
    for st in range(N1):
        if st == 16:
            P.label('OP_JOIN')
        op_step(P, st)
        if OPT['lds2'] <= st < OPT['lds2'] + 3:
            op_wl(P, st - OPT['lds2'])
        if st % 4 == 3 and OPT['ts'] == 1:
            stamp(P, 16 + st // 4)
    stamp(P, 25)
    P('s_branch OP2_START')
    P.label('LOADER')
    P.reset()
    P('s_setprio %d' % OPT['pl'])
    KX = 230
    for w in range(1, 4):
        P('v_xor_b32 v%d, 0x%x, v%d' % (KX + w, w << 6, vOK))
    P('v_mov_b32 v%d, 0x%x' % (vFA, FLG))
    P('s_add_u32 s%d, s%d, s%d' % (sKV, sKV, sKT))
    for k in range(7):
        if 1 <= k <= 5:
            P('s_mov_b32 s%d, 0x400000' % sT2)
            P.label('LD_SPIN%d' % k)
            P('ds_read_b128 %s, v%d' % (vr(236, 4), vFA))
            P('s_sub_u32 s%d, s%d, 1' % (sT2, sT2))
            P('s_cbranch_scc1 LD_GO%d' % k)
            P('s_waitcnt lgkmcnt(0)')
            P('v_min3_u32 v236, v236, v237, v238')
            P('v_min_u32 v236, v236, v239')
            P('v_readfirstlane_b32 s%d, v236' % sT1)
            P('s_cmp_lt_u32 s%d, %d' % (sT1, k))
            P('s_cbranch_scc1 LD_SPIN%d' % k)
            P.label('LD_GO%d' % k)
        if k <= 5:
            slot = SLOT * ((10 + k) % 3)
            for kv in range(2):
                for i in range(4):
                    P('s_add_u32 s%d, s%d, 0x%x' % (sT0, sKV, 16384 * k + 4096 * i))
                    P('s_mov_b32 m0, 0x%x' % (slot + 16384 * kv + 4096 * i))
                    for w in range(4):
                        P('buffer_load_dwordx4 v%d, %s, s%d offen offset:%d%s lds' % (
                            vOV if kv else (KX + w if w else vOK), sr(V_ if kv else K_, 4), sT0, 1024 * w,
                            ' nt' if OPT['nt'] else ''))
        if k == 0:
            o_store(P)
            P('s_waitcnt vmcnt(0)')
            set_flag(P, 0)
            stamp(P, 4)
        else:
            for i in range(4):
                P('v_mov_b32 v%d, %d' % (236 + i, k if k < 6 else 7))
            P('s_waitcnt vmcnt(%d)' % (32 if k <= 5 else 0))
            P('ds_write_b128 v%d, %s offset:16' % (vFA, vr(236, 4)))
            stamp(P, 16 + k)
    P('s_setprio 0')
    for i in range(16, 16 + NW):
        op_w(P, i)
    poll(P, 0, 'B')
    for i in range(16, 16 + NO):
        op_o(P, i)
    for i in range(3):
        op_wl(P, i)
    for i in range(80):
        P('v_mov_b32 v%d, 0' % (AC + i))
    P('s_waitcnt vmcnt(15)')
    stamp(P, 24)
    P('s_branch OP_JOIN')
    P.label('G1_FIN')
    P.reset()
    op_addr(P)
    o_store(P)
    stamp(P, 4)
    P('s_setprio 0')
    P('s_mul_i32 s%d, s%d, 15360' % (sLW, sWL))
    P('s_add_u32 s%d, s%d, 0x8000' % (sLW, sLW))
    P('v_mov_b32 v%d, 0x%x' % (vFA, FLG))
    for i in range(80):
        P('v_mov_b32 v%d, 0' % (AC + i))
    P('s_mov_b32 s%d, 0x400000' % sT2)
    P.label('G1_SPIN')
    P('ds_read_b128 %s, v%d' % (vr(236, 4), vFA))
    P('s_sub_u32 s%d, s%d, 1' % (sT2, sT2))
    P('s_cbranch_scc1 G1_GO')
    P('s_waitcnt lgkmcnt(0)')
    P('v_min3_u32 v236, v236, v237, v238')
    P('v_min_u32 v236, v236, v239')
    P('v_readfirstlane_b32 s%d, v236' % sT1)
    P('s_cmp_lt_u32 s%d, 7' % sT1)
    P('s_cbranch_scc1 G1_SPIN')
    P.label('G1_GO')
    P('s_waitcnt vmcnt(0)')
    set_flag(P, 1)
    stamp(P, 5)
    for i in range(N1, N1 + NW):
        op_w(P, i)
    for i in range(3):
        op_wl(P, i)
    P.label('OP2_START')
    P('v_add_u32 v%d, s%d, v%d' % (vLR, sLW, vA0))
    poll(P, 1, 'C')
    P.reset()
    stamp(P, 26)
    for i in range(N1, N1 + NO):
        op_o(P, i)
    for st in range(N1, N1 + 8):
        op_step(P, st)
    stamp(P, 27)
    op_final(P)
    stamp(P, 28)
    stamp_flush(P)
    P.label('A_END')
    P('s_endpgm')
    return P.finalize()


AC, WRG, ORG = 16, 96, 196
NW, NO, N1 = 5, 3, 20
vA0, vA1, vPL, vPA, vLR = 244, 245, 246, 247, 248
sLW = sXB


def op_addr(P):
    P('v_lshlrev_b32 v%d, 4, v0' % vA0)
    P('v_add_u32 v%d, 0x1000, v%d' % (vA1, vA0))


def op_u(P, s):
    if s < N1:
        P('s_add_u32 s%d, s%d, %d' % (sT0, sUB1, s))
        P('s_and_b32 s%d, s%d, 63' % (sT0, sT0))
    else:
        P('s_add_u32 s%d, s%d, %d' % (sT0, sR2, s - N1))
        P('s_and_b32 s%d, s%d, 7' % (sT0, sT0))
        P('s_add_u32 s%d, s%d, s%d' % (sT0, sT0, sUB2))


def op_w(P, s):
    f = WRG + 20 * (s % NW)
    if s >= N1 + 5:
        for a in range(5):
            P('ds_read_b128 %s, v%d offset:%d' % (vr(f + 4 * a, 4), vLR, 5120 * (s - N1 - 5) + 1024 * a))
        return
    op_u(P, s)
    P('s_mul_i32 s%d, s%d, 5120' % (sT0, sT0))
    P('s_add_u32 s%d, s%d, s%d' % (sT0, sT0, sWO))
    for a in range(5):
        P('buffer_load_dwordx4 %s, v%d, %s, s%d offen offset:%d sc1' % (
            vr(f + 4 * a, 4), vA0 + (a >> 2), sr(WS_, 4), sT0, (1024 * a) & 4095))


def op_wl(P, i):
    op_u(P, N1 + 5 + i)
    P('s_add_u32 m0, s%d, %d' % (sLW, 5120 * i))
    P('s_mul_i32 s%d, s%d, 5120' % (sT0, sT0))
    P('s_add_u32 s%d, s%d, s%d' % (sT0, sT0, sWO))
    for a in range(5):
        if a == 4:
            P('s_add_u32 m0, m0, 0x1000')
        P('buffer_load_dwordx4 v%d, %s, s%d offen offset:%d sc1 lds' % (
            vA0 + (a >> 2), sr(WS_, 4), sT0, (1024 * a) & 4095))


def op_o(P, s):
    op_u(P, s)
    P('s_lshl_b32 s%d, s%d, 12' % (sT0, sT0))
    P('s_add_u32 s%d, s%d, s%d' % (sT0, sT0, sOO))
    f = ORG + 16 * (s % NO)
    for t in range(4):
        P('buffer_load_dwordx4 %s, v%d, %s, s%d offen offset:%d sc1' % (
            vr(f + 4 * t, 4), vA0, sr(WS_, 4), sT0, 1024 * t))


def op_step(P, s):
    fw, fo = WRG + 20 * (s % NW), ORG + 16 * (s % NO)
    for t in range(4):
        for a in range(5):
            d = AC + 4 * (5 * t + a)
            P('v_mfma_f32_16x16x32_bf16 %s, %s, %s, %s' % (
                vr(d, 4), vr(fw + 4 * a, 4), vr(fo + 4 * t, 4), '0' if s == 0 else vr(d, 4)))
    if s + NO < (N1 if s < N1 else N1 + 8):
        op_o(P, s + NO)
    if s + NW < N1 + 8:
        op_w(P, s + NW)


def set_flag(P, rnd):
    P('v_mov_b32 v%d, 1' % vPL)
    P('v_mov_b32 v%d, 0x%x' % (vPA, 4096 * rnd))
    P('s_mov_b64 exec, 1')
    P('buffer_store_dword v%d, v%d, %s, s%d offen sc1' % (vPL, vPA, sr(WS_, 4), sFLP))
    P('s_mov_b64 exec, -1')


def poll(P, rnd, nm):
    P('v_and_b32 v%d, %d, v0' % (vPA, 31 if rnd == 0 else 3))
    P('v_lshlrev_b32 v%d, 2, v%d' % (vPA, vPA))
    if rnd:
        P('s_lshl_b32 s%d, s%d, 4' % (sT1, sR1))
        P('s_add_u32 s%d, s%d, s%d' % (sT1, sT1, sFLC))
        P('s_add_u32 s%d, s%d, 0x1000' % (sT1, sT1))
    P('s_mov_b32 s%d, 0x40000' % sT2)
    P('s_branch POLL%s_IN' % nm)
    P.label('POLL%s' % nm)
    P('s_sub_u32 s%d, s%d, 1' % (sT2, sT2))
    P('s_cbranch_scc1 POLL%s_OUT' % nm)
    if OPT['slp']:
        P('s_sleep %d' % OPT['slp'])
    P.label('POLL%s_IN' % nm)
    P('buffer_load_dword v%d, v%d, %s, s%d offen sc1' % (vPL, vPA, sr(WS_, 4), sT1 if rnd else sFLC))
    P('s_waitcnt vmcnt(0)')
    P('v_cmp_ne_u32 vcc, 1, v%d' % vPL)
    P('s_cbranch_vccnz POLL%s' % nm)
    P.label('POLL%s_OUT' % nm)


def op_final(P):
    FB = 96
    P('s_mul_i32 s%d, s%d, 20480' % (sT0, sW))
    P('v_add_u32 v5, s%d, v%d' % (sT0, vA0))
    P('s_mul_i32 s%d, s%d, 5120' % (sT0, sWL))
    P('s_mul_i32 s%d, s%d, 3072' % (sT1, sG))
    P('s_add_u32 s%d, s%d, s%d' % (sT0, sT0, sT1))
    P('v_add_u32 v1, s%d, v%d' % (sT0, vA0))
    P('v_add_u32 v2, 0x%x, v1' % (20480 * 3))
    P('v_add_u32 v3, 0x%x, v1' % (20480 * 6))
    P('v_and_b32 v8, 15, v0')
    P('s_movk_i32 s%d, 1280' % sT0)
    P('v_mul_lo_u32 v8, v8, s%d' % sT0)
    P('v_lshrrev_b32 v9, 4, v0')
    P('v_lshl_add_u32 v8, v9, 3, v8')
    P('s_lshr_b32 s%d, s%d, 17' % (sT0, sOO))
    P('s_add_u32 s%d, s%d, s%d' % (sT0, sT0, sWL))
    P('s_mul_i32 s%d, s%d, 20480' % (sT0, sT0))
    P('s_lshr_b32 s%d, s2, 5' % sT1)
    P('s_mul_i32 s%d, s%d, 160' % (sT1, sT1))
    P('s_add_u32 s%d, s%d, s%d' % (sT0, sT0, sT1))
    P('s_mul_i32 s%d, s%d, 96' % (sT1, sG))
    P('s_add_u32 s%d, s%d, s%d' % (sT0, sT0, sT1))
    P('s_barrier')
    for n in range(20):
        P('ds_write_b128 v5, %s offset:%d' % (vr(AC + 4 * n, 4), 1024 * n))
    P('s_waitcnt lgkmcnt(0)')
    P('s_barrier')
    for a in range(3):
        for w in range(8):
            P('ds_read_b128 %s, v%d offset:%d' % (vr(FB + 32 * a + 4 * w, 4), 1 + w // 3, 20480 * (w % 3) + 1024 * a))
    for a in range(3):
        if a == 2:
            P('s_cmp_lg_u32 s%d, 0' % sG)
            P('s_cbranch_scc1 FIN_DONE')
        f = FB + 32 * a
        for (x, y) in ((0, 1), (2, 3), (4, 5), (6, 7), (0, 2), (4, 6), (0, 4)):
            for r in range(4):
                P('v_add_f32 v%d, v%d, v%d' % (f + 4 * x + r, f + 4 * x + r, f + 4 * y + r))
        P('v_cvt_pk_bf16_f32 v%d, v%d, v%d' % (10 + 2 * a, f, f + 1))
        P('v_cvt_pk_bf16_f32 v%d, v%d, v%d' % (11 + 2 * a, f + 2, f + 3))
        P('buffer_store_dwordx2 %s, v8, %s, s%d offen offset:%d' % (vr(10 + 2 * a, 2), sr(OUT_, 4), sT0, 32 * a))
    P.label('FIN_DONE')


def desc(name):
    return '''.p2align 6
.amdhsa_kernel %s
  .amdhsa_next_free_vgpr 256
  .amdhsa_next_free_sgpr 102
  .amdhsa_accum_offset 256
  .amdhsa_group_segment_fixed_size 0
  .amdhsa_kernarg_size 64
  .amdhsa_user_sgpr_count 2
  .amdhsa_user_sgpr_kernarg_segment_ptr 1
  .amdhsa_system_sgpr_workgroup_id_x 1
.end_amdhsa_kernel
''' % name


def main():
    n = NAME + '_kernel'
    t = HDR
    t += '; @launch grid=(256,1,1) block=(512,1,1) lds=163840\n'
    t += '.amdgcn_target "amdgcn-amd-amdhsa--gfx950"\n.text\n'
    t += '.globl %s\n.p2align 8\n.type %s,@function\n%s:\n%s' % (n, n, n, kernel_a())
    t += '.section .rodata,"a"\n'
    t += desc(n)
    open(sys.argv[1], 'w').write(t)


main()
```
